```python
import torch

def _softmax(x, axis=-1):
    return torch.softmax(x, dim=axis)
def _gelu(x):
    return torch.nn.functional.gelu(x, approximate="tanh")
def _silu(x):
    return torch.nn.functional.silu(x)
def _sigmoid(x):
    return torch.sigmoid(x)
def _layernorm(x, axis=-1, eps=1e-5):
    m = x.mean(dim=axis, keepdim=True)
    v = x.var(dim=axis, keepdim=True, unbiased=False)
    return (x - m) / torch.sqrt(v + eps)
def _scatter_add(tgt, idx, src, axis=0):
    return tgt.clone().index_add_(axis, idx, src)
def _segment_sum(src, seg, n):
    out = torch.zeros((n,) + src.shape[1:], dtype=src.dtype)
    return out.index_add_(0, seg, src)
def _pad(x, pw):
    flat = tuple(v for pair in reversed(pw) for v in pair)
    return torch.nn.functional.pad(x, flat)

kernel_name = 'recurrent_scan__linear_kernel_hedgehog__swiglu_ffn__prompt'

def setup_inputs():

    _w = (lambda a: (lambda t: t.to(torch.bfloat16) if t.is_floating_point() else t)(torch.as_tensor(a)))
    def _A_setup():
        B, S, D, H = 1, 2048, 576, 32
        Dh = D // H
        return {
            "x": _w((lambda *s: torch.randn(*s, dtype=torch.bfloat16) * 0.05)(B, S, D)),
            "wqkv": _w((lambda *s: torch.randn(*s, dtype=torch.bfloat16) * 0.2)(D, 3 * D)),
            "w_phi": _w((lambda *s: torch.randn(*s, dtype=torch.bfloat16) * 0.2)(H, Dh, Dh) * (Dh ** -0.5)),
            "wo": _w((lambda *s: torch.randn(*s, dtype=torch.bfloat16) * 0.05)(D, D)),
        }
    _A_in = _A_setup()

    def _B_setup():
        B, S, D, F = 1, 2048, 576, 4608
        return {
            "x": _w((lambda *s: torch.randn(*s, dtype=torch.bfloat16) * 0.05)(B, S, D)),
            "w_gate": _w((lambda *s: torch.randn(*s, dtype=torch.bfloat16) * 0.05)(D, F)),
            "w_up": _w((lambda *s: torch.randn(*s, dtype=torch.bfloat16) * 0.05)(D, F)),
            "w_down": _w((lambda *s: torch.randn(*s, dtype=torch.bfloat16) * 0.05)(F, D)),
        }
    _B_in = _B_setup()

    return {
        "A_x": _A_in["x"],
        "A_wqkv": _A_in["wqkv"],
        "A_w_phi": _A_in["w_phi"],
        "A_wo": _A_in["wo"],
        "B_x": _B_in["x"],
        "B_w_gate": _B_in["w_gate"],
        "B_w_up": _B_in["w_up"],
        "B_w_down": _B_in["w_down"],
    }

def reference(A_x, A_wqkv, A_w_phi, A_wo, B_x, B_w_gate, B_w_up, B_w_down):
    def _A_ref(x, wqkv, w_phi, wo):
        B, S, D = x.shape
        H = 32; Dh = D // H
        qkv = (lambda x, *d: x.permute(*d))((x @ wqkv).reshape(B, S, 3, H, Dh), 2, 0, 3, 1, 4)
        q, k, v = qkv[0], qkv[1], qkv[2]
        pq = torch.einsum("bhsd,hdf->bhsf", q, w_phi)
        pk = torch.einsum("bhsd,hdf->bhsf", k, w_phi)
        phi_q = torch.concatenate([_softmax(pq, axis=-1), _softmax(-pq, axis=-1)], axis=-1)
        phi_k = torch.concatenate([_softmax(pk, axis=-1), _softmax(-pk, axis=-1)], axis=-1)
        kv = torch.einsum("bhsf,bhsd->bhfd", phi_k, v)
        z  = torch.einsum("bhsf->bhf", phi_k)
        num = torch.einsum("bhqf,bhfd->bhqd", phi_q, kv)
        den = torch.einsum("bhqf,bhf->bhq", phi_q, z)[..., None] + 1e-6
        o = num / den
        return (lambda x, *d: x.permute(*d))(o, 0, 2, 1, 3).reshape(B, S, D) @ wo

    def _B_ref(x, w_gate, w_up, w_down):
        g = _silu(x @ w_gate)
        u = x @ w_up
        return (g * u) @ w_down

    x = A_x
    xn = _layernorm(x, axis=-1)
    s = _A_ref(xn, A_wqkv, A_w_phi, A_wo)
    g = _silu(_B_ref(xn, B_w_gate, B_w_up, B_w_down))
    return x + s * g
```

```python
import re

TRANS = ("v_exp_f32", "v_log_f32", "v_rcp_f32", "v_rsq_f32", "v_sqrt_f32", "v_sin_f32", "v_cos_f32")
NODEF = ("buffer_store", "global_store", "ds_write", "s_waitcnt", "s_barrier", "s_nop", "s_branch", "s_cbranch",
         "s_endpgm", "s_sleep", "s_setprio", "buffer_inv", "buffer_wbl2", "s_cmp", "s_bitcmp")
_reg1 = re.compile(r"^-?\|?([vas])(\d+)\|?$")
_regn = re.compile(r"^-?([vas])\[(\d+):(\d+)\]$")

def regs_of(tok):
    tok = tok.strip()
    if tok.startswith("abs(") or tok.startswith("-abs("):
        tok = tok[tok.index("(") + 1:-1]
    m = _reg1.match(tok)
    if m: return [m.group(1) + m.group(2)]
    m = _regn.match(tok)
    if m: return [m.group(1) + str(i) for i in range(int(m.group(2)), int(m.group(3)) + 1)]
    if tok in ("vcc", "exec"): return [tok]
    if tok in ("vcc_lo", "vcc_hi"): return ["vcc"]
    if tok in ("exec_lo", "exec_hi"): return ["exec"]
    if tok == "m0": return ["m0"]
    return []

class Ins:
    __slots__ = ("text", "op", "kind", "reads", "writes", "tag", "passes", "srcc", "srcab", "cost", "data", "dpp", "note")
    def __init__(self, text, tag=None):
        self.text = text.strip()
        self.tag = tag
        self.passes = 0; self.srcc = []; self.srcab = []; self.data = []; self.dpp = False; self.note = None
        t = self.text.split(";")[0].strip()
        if t.endswith(":"):
            self.op = "label"; self.kind = "label"; self.reads = set(); self.writes = set(); self.cost = 0; return
        if t.startswith("@"):
            self.op = t.split()[0]; self.kind = "pseudo"; self.reads = set(); self.writes = set(); self.cost = 1
            self.tag = t.split()[1:] ; return
        sp = t.split(None, 1)
        op = sp[0]; self.op = op
        rest = sp[1] if len(sp) > 1 else ""
        parts = [p.strip() for p in rest.split(",")] if rest else []
        mods = ""
        if parts:
            last = parts[-1].split(None, 1)
            parts[-1] = last[0]
            mods = last[1] if len(last) > 1 else ""
        if op.startswith("s_waitcnt") or op in ("s_nop", "s_sleep", "s_setprio", "s_barrier", "s_endpgm") or op.startswith("s_branch") or op.startswith("s_cbranch"):
            parts = []
        opregs = [regs_of(p) for p in parts]
        modl = mods.split()
        reads = set(); writes = set()
        ndef = 1
        if op.startswith(NODEF): ndef = 0
        is_dma = op.startswith("buffer_load") and "lds" in modl
        is_atomic = op.startswith("buffer_atomic") or op.startswith("global_atomic")
        if is_dma: ndef = 0
        if is_atomic and "sc0" not in modl: ndef = 0
        if op.startswith("v_permlane32_swap") or op.startswith("v_permlane16_swap") or op.startswith("v_swap"): ndef = 2
        if op.startswith(("v_add_co", "v_addc_co", "v_sub_co")): ndef = 2
        for i, r in enumerate(opregs):
            if i < ndef: writes.update(r)
            else: reads.update(r)
        rw = (op.startswith(("v_fmac", "v_permlane", "v_swap", "v_writelane", "s_addk", "s_mulk", "s_cmov")) or "d16" in op or "_dpp" in op or "_sdwa" in op
              or (is_atomic and ndef == 1))
        if rw:
            for i in range(ndef): reads.update(opregs[i])
        if op.startswith("v_mfma"):
            self.kind = "mfma"; self.passes = 8 if "32x32x16" in op else 4
            self.srcab = opregs[1] + opregs[2]; self.srcc = opregs[3]
        elif op.startswith(TRANS): self.kind = "trans"
        elif op.startswith("v_"): self.kind = "valu"
        elif op.startswith("ds_"): self.kind = "ds"
        elif op.startswith(("buffer_", "global_")):
            if op in ("buffer_inv", "buffer_wbl2"): self.kind = "vm_misc"
            elif is_dma: self.kind = "dma"; reads.add("m0")
            elif is_atomic: self.kind = "vm_atomic"
            elif "store" in op:
                self.kind = "vm_store"
                if "x4" in op or "x3" in op:
                    self.data = opregs[0] if op.startswith("buffer_") else opregs[1]
            else: self.kind = "vm_load"
        elif op.startswith(("s_load", "s_buffer_load", "s_memtime", "s_memrealtime")): self.kind = "smem"
        elif op.startswith("s_"): self.kind = "salu"
        else: raise ValueError("unknown op " + t)
        if "_dpp" in op: self.dpp = True
        if op.startswith("s_and_saveexec") or op.startswith("s_or_saveexec"): writes.add("exec"); reads.add("exec")
        if op.startswith("v_cmp") and not writes: writes.add("vcc")
        self.reads = reads; self.writes = writes
        self.cost = 2 if self.kind == "trans" else 1
    def states(self):
        if self.kind in ("label", "pseudo"): return 0
        if self.op == "s_nop": return int(self.text.split()[1], 0) + 1
        return 1
    def __repr__(self): return self.text

def I(text, tag=None): return Ins(text, tag)
def Is(text, tag=None): return [Ins(l, tag) for l in text.split("\n") if l.strip() and not l.strip().startswith(";")]

VMK = ("vm_load", "vm_store", "dma", "vm_atomic", "vm_misc")

def insert_waits(ins):
    out = []
    vm = []
    lg = []
    def need(q, pred):
        idx = -1
        for i, e in enumerate(q):
            if pred(e): idx = i
        return idx
    for x in ins:
        nv = None; nl = None
        if x.kind == "pseudo":
            tags = set(x.tag)
            if x.op == "@waitvm":
                i = need(vm, lambda e: e[1] in tags)
                if i >= 0: nv = len(vm) - 1 - i
            elif x.op == "@waitlgkm":
                i = need(lg, lambda e: e[1] in tags)
                if i >= 0: nl = len(lg) - 1 - i
            elif x.op == "@waitall":
                if vm: nv = 0
                if lg: nl = 0
            elif x.op == "@waitvmall":
                if vm: nv = 0
            elif x.op == "@waitlgkmall":
                if lg: nl = 0
            elif x.op == "@reset":
                vm = []; lg = []; continue
            else: raise ValueError(x.text)
        elif x.op.startswith("s_waitcnt"):
            m = re.search(r"vmcnt\((\d+)\)", x.text)
            if m:
                n = int(m.group(1)); vm = vm[len(vm) - n:] if n < len(vm) and n > 0 else ([] if n == 0 else vm)
            m = re.search(r"lgkmcnt\((\d+)\)", x.text)
            if m:
                n = int(m.group(1)); lg = lg[len(lg) - n:] if n < len(lg) and n > 0 else ([] if n == 0 else lg)
            out.append(x); continue
        elif x.kind != "label":
            touched = x.reads | x.writes
            i = need(vm, lambda e: e[0] & touched)
            if i >= 0: nv = len(vm) - 1 - i
            i = need(lg, lambda e: e[0] & touched)
            if i >= 0: nl = len(lg) - 1 - i
        if nl is not None and any(e[2] for e in lg): nl = 0
        if nv is not None or nl is not None:
            s = []
            if nv is not None:
                if nv <= 62: s.append(f"vmcnt({nv})")
                else: s.append("vmcnt(62)"); nv = 62
                vm = vm[len(vm) - nv:] if nv > 0 else []
            if nl is not None:
                if nl > 14: nl = 14
                s.append(f"lgkmcnt({nl})")
                lg = lg[len(lg) - nl:] if nl > 0 else []
            out.append(Ins("s_waitcnt " + " ".join(s)))
        if x.kind == "pseudo": continue
        out.append(x)
        if x.kind in VMK: vm.append((set(x.writes), x.tag))
        elif x.kind == "ds": lg.append((set(x.writes), x.tag, False))
        elif x.kind == "smem": lg.append((set(x.writes), x.tag, True))
    return out

def isv(r): return r[0] in "va" and r not in ("vcc",)
def iss(r): return (r[0] == "s" and r != "scc") or r == "vcc"

def required(p, c):
    n = 0
    pv = p.kind in ("valu", "trans"); cv = c.kind in ("valu", "trans")
    if pv:
        wv = {r for r in p.writes if isv(r)}; ws = {r for r in p.writes if iss(r)}
        if c.kind == "mfma" and wv & c.reads: n = max(n, 2)
        if p.kind == "trans" and c.kind == "valu" and wv & c.reads: n = max(n, 1)
        if c.op.startswith("v_permlane") and wv & c.reads: n = max(n, 2)
        if c.dpp and wv & c.reads: n = max(n, 2)
        if c.op.startswith(("v_readlane", "v_readfirstlane")) and wv & c.reads: n = max(n, 1)
        if ("_sdwa" in p.op) and cv and wv & (c.reads | c.writes): n = max(n, 1)
        if ws:
            if cv and ws & c.reads: n = max(n, 4 if c.op.startswith(("v_readlane", "v_writelane")) else 2)
            if c.kind in VMK and ws & c.reads: n = max(n, 5)
            if c.kind in ("salu", "smem") and ws & c.reads: n = max(n, 2)
    if p.kind == "mfma":
        D = p.writes
        if c.kind == "mfma":
            if D & set(c.srcab): n = max(n, {4: 8, 8: 12}[p.passes])
            if D & set(c.srcc):
                if not (set(c.srcc) == D and c.passes == p.passes): n = max(n, {4: 6, 8: 10}[p.passes])
            elif D & c.writes and not (c.writes == D and c.passes == p.passes): n = max(n, {4: 6, 8: 10}[p.passes])
        elif D & (c.reads | c.writes): n = max(n, {4: 8, 8: 12}[p.passes])
        if cv and set(p.srcc) & c.writes: n = max(n, {4: 3, 8: 7}[p.passes])
    if p.kind == "salu" and "m0" in p.writes and c.kind == "dma": n = max(n, 1)
    if p.kind == "vm_store" and p.data and set(p.data) & c.writes: n = max(n, 2)
    return n

def insert_nops(ins):
    out = []
    nn = 0
    for x in ins:
        if x.kind == "label":
            out.append(x); continue
        dist = 0; need = 0
        for p in reversed(out):
            if dist >= 13: break
            if p.kind == "label": continue
            r = required(p, x)
            if r - dist > need: need = r - dist
            dist += p.states()
        while need > 0:
            k = min(need, 16)
            out.append(Ins(f"s_nop {k-1}")); need -= k; nn += k
        out.append(x)
    return out, nn

class Kernel:
    def __init__(self, name, vgpr, agpr=0, sgpr=100):
        self.name = name; self.ins = []; self.vgpr = vgpr; self.agpr = agpr; self.sgpr = sgpr
    def __call__(self, s, tag=None):
        if isinstance(s, str): self.ins.extend(Is(s, tag))
        elif isinstance(s, Ins): self.ins.append(s)
        else: self.ins.extend(s)
    def finalize(self):
        w = insert_waits(self.ins)
        f, nn = insert_nops(w)
        self.final = f; self.nops = nn
        return f
    def text(self):
        f = self.finalize()
        body = "\n".join((x.text if x.kind == "label" else "    " + x.text) for x in f)
        return f".globl {self.name}\n.p2align 8\n.type {self.name},@function\n{self.name}:\n{body}\n"
    def desc(self):
        acc = (self.vgpr + 3) // 4 * 4
        nfv = acc + self.agpr if self.agpr else self.vgpr
        return (f".p2align 6\n.amdhsa_kernel {self.name}\n  .amdhsa_next_free_vgpr {nfv}\n  .amdhsa_next_free_sgpr {self.sgpr}\n"
                f"  .amdhsa_accum_offset {acc}\n  .amdhsa_group_segment_fixed_size 0\n  .amdhsa_kernarg_size 88\n"
                f"  .amdhsa_user_sgpr_count 2\n  .amdhsa_user_sgpr_kernarg_segment_ptr 1\n  .amdhsa_system_sgpr_workgroup_id_x 1\n"
                f"  .amdhsa_float_denorm_mode_32 3\n  .amdhsa_float_denorm_mode_16_64 3\n"
                f".end_amdhsa_kernel\n")

def emit_file(path, launches, kernels, header=""):
    s = header
    for (name, grid, block, lds) in launches:
        s += f"; @launch kernel={name} grid=({grid},1,1) block=({block},1,1) lds={lds}\n"
    s += '.amdgcn_target "amdgcn-amd-amdhsa--gfx950"\n.text\n'
    for k in kernels: s += k.text()
    s += ".p2align 8\n.fill 64, 4, 0xBF800000\n"
    s += '.section .rodata,"a"\n'
    for k in kernels: s += k.desc()
    open(path, "w").write(s)
```

```python
from core import *
from layout import *

N_LN = 512; N_Q = 576; N_S = 320; N_P = 48; N_D = 1458
def srd(k, d, ptr, nbytes):
    k(f"s_mov_b32 s{d}, s{ptr}\ns_mov_b32 s{d+1}, s{ptr+1}\ns_mov_b32 s{d+2}, {nbytes}\ns_mov_b32 s{d+3}, 0x20000")

def wave_sum(k, v, s):
    for sh in (1, 2, 4, 8):
        k(f"v_add_f32_dpp v{v}, v{v}, v{v} row_shr:{sh} row_mask:0xf bank_mask:0xf bound_ctrl:0")
    k(f"v_add_f32_dpp v{v}, v{v}, v{v} row_bcast:15 row_mask:0xa bank_mask:0xf")
    k(f"v_add_f32_dpp v{v}, v{v}, v{v} row_bcast:31 row_mask:0xc bank_mask:0xf")
    k(f"v_readlane_b32 s{s}, v{v}, 63")

def rnd_bf16(k, v):
    k(f"v_cvt_pk_bf16_f32 v{v}, v{v}, v{v}\nv_lshlrev_b32 v{v}, 16, v{v}")

def build_k1():
    k = Kernel("prep_kernel", vgpr=64, sgpr=64)
    total = N_LN + N_Q + N_S + N_P + N_D + 1
    k(f"""
    s_load_dwordx8 s[4:11], s[0:1], 0
    s_load_dwordx4 s[12:15], s[0:1], 40
    s_load_dwordx2 s[16:17], s[0:1], 56
    s_load_dwordx2 s[18:19], s[0:1], 80
    v_and_b32 v1, 63, v0
    v_lshrrev_b32 v2, 6, v0
    v_readfirstlane_b32 s3, v2
    s_waitcnt lgkmcnt(0)
    """)
    srd(k, 20, 18, WS_BYTES)
    k(f"""
    s_cmp_lt_u32 s2, {N_LN}
    s_cbranch_scc1 L_ln
    s_sub_u32 s2, s2, {N_LN}
    s_cmp_lt_u32 s2, {N_Q}
    s_cbranch_scc1 L_q
    s_sub_u32 s2, s2, {N_Q}
    s_cmp_lt_u32 s2, {N_S}
    s_cbranch_scc1 L_s
    s_sub_u32 s2, s2, {N_S}
    s_cmp_lt_u32 s2, {N_P}
    s_cbranch_scc1 L_p
    s_sub_u32 s2, s2, {N_P}
    s_cmp_lt_u32 s2, {N_D}
    s_cbranch_scc1 L_d
    s_sub_u32 s2, s2, {N_D}
    s_cmp_eq_u32 s2, 0
    s_cbranch_scc0 L_end
    """)
    k(f"""
    v_lshlrev_b32 v3, 4, v0
    v_add_u32 v3, {FLG2}, v3
    v_mov_b32 v4, 0
    v_mov_b32 v5, 0
    v_mov_b32 v6, 0
    v_mov_b32 v7, 0
    s_mov_b32 s30, 4096
    s_mov_b32 s31, 8192
    s_mov_b32 s32, 12288
    buffer_store_dwordx4 v[4:7], v3, s[20:23], 0 offen
    buffer_store_dwordx4 v[4:7], v3, s[20:23], s30 offen
    buffer_store_dwordx4 v[4:7], v3, s[20:23], s31 offen
    buffer_store_dwordx4 v[4:7], v3, s[20:23], s32 offen
    L_end:
    s_endpgm
    """)
    k("L_ln:\n@reset")
    srd(k, 24, 4, 2048*1152)
    k(f"""
    s_lshl_b32 s30, s2, 2
    s_add_u32 s30, s30, s3
    s_mul_i32 s31, s30, 1152
    v_lshlrev_b32 v3, 5, v1
    v_cmp_gt_u32 vcc, 36, v1
    v_mov_b32 v4, {OOB}
    v_cndmask_b32 v3, v4, v3, vcc
    buffer_load_dwordx4 v[8:11], v3, s[24:27], s31 offen
    buffer_load_dwordx4 v[12:15], v3, s[24:27], s31 offen offset:16
    s_lshr_b32 s32, s30, 5
    s_mul_i32 s32, s32, {36*1024}
    s_and_b32 s33, s30, 31
    s_lshl_b32 s33, s33, 4
    s_add_u32 s32, s32, s33
    v_lshlrev_b32 v5, 10, v1
    v_cndmask_b32 v5, v4, v5, vcc
    """)
    for i in range(8):
        k(f"v_lshlrev_b32 v{16+2*i}, 16, v{8+i}\nv_and_b32 v{17+2*i}, 0xffff0000, v{8+i}")
    k("v_add_f32 v6, v16, v17")
    for i in range(2, 16): k(f"v_add_f32 v6, v6, v{16+i}")
    wave_sum(k, 6, 34)
    k(f"v_mov_b32 v7, 0x3ae38e39\nv_mul_f32 v7, s34, v7")
    k("v_sub_f32 v32, v16, v7\nv_mul_f32 v6, v32, v32")
    for i in range(1, 16): k(f"v_sub_f32 v32, v{16+i}, v7\nv_fmac_f32 v6, v32, v32")
    k("v_cndmask_b32 v6, 0, v6, vcc")
    wave_sum(k, 6, 35)
    k(f"v_mov_b32 v33, 0x3ae38e39\nv_mul_f32 v33, s35, v33")
    rnd_bf16(k, 7); rnd_bf16(k, 33)
    k("v_add_f32 v33, 0x3727c5ac, v33")
    rnd_bf16(k, 33)
    k("v_sqrt_f32 v33, v33")
    rnd_bf16(k, 33)
    k("v_rcp_f32 v33, v33")
    for i in range(16): k(f"v_sub_f32 v{16+i}, v{16+i}, v7")
    for i in range(8):
        k(f"v_cvt_pk_bf16_f32 v{8+i}, v{16+2*i}, v{17+2*i}")
    for i in range(8):
        k(f"v_lshlrev_b32 v{16+2*i}, 16, v{8+i}\nv_and_b32 v{17+2*i}, 0xffff0000, v{8+i}")
    for i in range(16): k(f"v_mul_f32 v{16+i}, v{16+i}, v33")
    for i in range(8):
        k(f"v_cvt_pk_bf16_f32 v{8+i}, v{16+2*i}, v{17+2*i}")
    k(f"""
    buffer_store_dwordx4 v[8:11], v5, s[20:23], s32 offen
    buffer_store_dwordx4 v[12:15], v5, s[20:23], s32 offen offset:512
    s_endpgm
    """)
    k("L_q:\n@reset")
    srd(k, 24, 6, 576*3456)
    k(f"""
    s_mul_hi_u32 s30, s2, {(1<<32)//18+1}
    s_mul_i32 s31, s30, 18
    s_sub_u32 s31, s2, s31
    s_and_b32 s32, s31, 1
    s_lshr_b32 s31, s31, 1
    s_lshl_b32 s31, s31, 6
    v_lshrrev_b32 v3, 2, v0
    v_add_u32 v3, s31, v3
    s_movk_i32 s33, 3456
    v_mul_lo_u32 v3, v3, s33
    s_mul_i32 s34, s30, 36
    v_add_u32 v3, s34, v3
    v_bfe_u32 v4, v0, 1, 1
    v_xor_b32 v4, s32, v4
    v_and_b32 v5, 1, v0
    v_lshlrev_b32 v6, 4, v5
    v_add_u32 v6, v3, v6
    v_mov_b32 v7, 1152
    v_mul_u32_u24 v7, v7, v4
    v_add_u32 v7, 1152, v7
    v_mul_u32_u24 v7, s32, v7
    v_add_u32 v6, v6, v7
    v_add_u32 v8, 0, v6
    v_add_u32 v9, 4, v6
    v_add_u32 v10, 8, v6
    v_add_u32 v11, 12, v6
    s_cmp_eq_u32 s32, 1
    s_cbranch_scc1 L_q2
    v_mov_b32 v12, {OOB}
    v_cmp_eq_u32 vcc, 1, v5
    v_add_u32 v13, 32, v3
    v_add_u32 v14, {32+1152}, v3
    v_add_u32 v15, {32+2304}, v3
    v_cndmask_b32 v13, v13, v12, vcc
    v_cndmask_b32 v14, v14, v12, vcc
    v_cndmask_b32 v15, v15, v12, vcc
    v_cmp_eq_u32 vcc, 1, v4
    s_nop 1
    v_cndmask_b32 v8, v8, v13, vcc
    v_cndmask_b32 v9, v9, v14, vcc
    v_cndmask_b32 v10, v10, v15, vcc
    v_cndmask_b32 v11, v11, v12, vcc
    L_q2:
    buffer_load_dword v16, v8, s[24:27], 0 offen
    buffer_load_dword v17, v9, s[24:27], 0 offen
    buffer_load_dword v18, v10, s[24:27], 0 offen
    buffer_load_dword v19, v11, s[24:27], 0 offen
    s_lshl_b32 s35, s2, 12
    s_add_u32 s35, s35, {W1Q}
    v_lshlrev_b32 v3, 4, v0
    buffer_store_dwordx4 v[16:19], v3, s[20:23], s35 offen
    s_endpgm
    """)
    k("L_s:\n@reset")
    k(f"""
    s_mul_hi_u32 s30, s2, {(1<<32)//10+1}
    s_mul_i32 s31, s30, 10
    s_sub_u32 s31, s2, s31
    s_and_b32 s32, s31, 1
    s_lshr_b32 s31, s31, 1
    s_cmp_eq_u32 s32, 1
    s_cselect_b32 s24, s14, s12
    s_cselect_b32 s25, s15, s13
    s_mov_b32 s26, {576*9216}
    s_mov_b32 s27, 0x20000
    v_bfe_u32 v4, v0, 1, 1
    v_xor_b32 v4, s32, v4
    s_lshl_b32 s31, s31, 1
    v_add_u32 v4, s31, v4
    v_lshlrev_b32 v4, 6, v4
    v_lshrrev_b32 v3, 2, v0
    v_add_u32 v3, v3, v4
    s_movk_i32 s33, 9216
    v_mul_lo_u32 v3, v3, s33
    v_and_b32 v5, 1, v0
    v_lshlrev_b32 v5, 4, v5
    v_add_u32 v3, v3, v5
    s_lshl_b32 s34, s30, 5
    s_add_u32 s34, s34, 8192
    buffer_load_dwordx4 v[16:19], v3, s[24:27], s34 offen
    s_lshl_b32 s35, s2, 12
    s_add_u32 s35, s35, {W1S}
    v_lshlrev_b32 v3, 4, v0
    buffer_store_dwordx4 v[16:19], v3, s[20:23], s35 offen
    s_endpgm
    """)
    k("L_p:\n@reset")
    srd(k, 24, 8, 32*648)
    k(f"""
    s_lshl_b32 s30, s2, 2
    s_add_u32 s30, s30, s3
    s_mul_hi_u32 s31, s30, {(1<<32)//6+1}
    s_mul_i32 s32, s31, 6
    s_sub_u32 s32, s30, s32
    s_cmp_ge_u32 s32, 3
    s_cselect_b32 s33, 1, 0
    s_mul_i32 s34, s33, 3
    s_sub_u32 s34, s32, s34
    v_and_b32 v3, 31, v1
    v_lshrrev_b32 v4, 5, v1
    v_bfe_u32 v5, v3, 2, 1
    v_lshrrev_b32 v6, 3, v3
    v_lshlrev_b32 v6, 2, v6
    v_and_b32 v7, 3, v3
    v_add_u32 v6, v6, v7
    s_lshl_b32 s35, s33, 4
    v_add_u32 v6, s35, v6
    s_mul_i32 s36, s31, 648
    v_lshlrev_b32 v7, 1, v6
    v_add_u32 v7, s36, v7
    v_mov_b32 v12, {OOB}
    v_cmp_gt_u32 vcc, 18, v6
    s_nop 1
    v_cndmask_b32 v7, v12, v7, vcc
    v_mov_b32 v16, 0
    v_mov_b32 v17, 0
    v_mov_b32 v18, 0
    v_mov_b32 v19, 0
    s_cmp_eq_u32 s34, 2
    s_cbranch_scc1 L_p2
    v_cmp_eq_u32 vcc, s34, v5
    s_nop 1
    v_cndmask_b32 v7, v12, v7, vcc
    v_mul_u32_u24 v8, {4*36}, v4
    v_add_u32 v7, v7, v8
    """)
    for i in range(8):
        d = (i & 3) + 8 * (i >> 2)
        k(f"buffer_load_ushort v{24+i}, v7, s[24:27], 0 offen offset:{d*36}")
    for i in range(4): k(f"v_lshl_or_b32 v{16+i}, v{25+2*i}, 16, v{24+2*i}")
    k(f"""
    s_branch L_p3
    L_p2:
    @reset
    v_cmp_eq_u32 vcc, 0, v4
    s_nop 1
    v_cndmask_b32 v7, v12, v7, vcc
    v_cmp_eq_u32 vcc, 0, v5
    s_nop 1
    v_cndmask_b32 v8, v12, v7, vcc
    v_cndmask_b32 v9, v7, v12, vcc
    buffer_load_ushort v24, v8, s[24:27], 0 offen offset:{16*36}
    buffer_load_ushort v25, v8, s[24:27], 0 offen offset:{17*36}
    buffer_load_ushort v26, v9, s[24:27], 0 offen offset:{16*36}
    buffer_load_ushort v27, v9, s[24:27], 0 offen offset:{17*36}
    v_lshl_or_b32 v16, v25, 16, v24
    v_lshl_or_b32 v17, v27, 16, v26
    L_p3:
    s_waitcnt vmcnt(0)
    s_lshl_b32 s35, s30, 10
    s_add_u32 s35, s35, {PHIA}
    v_lshlrev_b32 v3, 4, v1
    buffer_store_dwordx4 v[16:19], v3, s[20:23], s35 offen
    s_endpgm
    """)
    k("L_d:\n@reset")
    k(f"""
    s_lshl_b32 s30, s2, 2
    s_add_u32 s30, s30, s3
    s_mul_hi_u32 s31, s30, {(1<<32)//9+1}
    s_mul_i32 s32, s31, 9
    s_sub_u32 s32, s30, s32
    s_mul_hi_u32 s33, s31, {(1<<32)//162+1}
    s_mul_i32 s34, s33, 162
    s_sub_u32 s34, s31, s34
    v_and_b32 v3, 15, v1
    v_lshrrev_b32 v4, 4, v1
    v_lshrrev_b32 v5, 1, v4
    v_and_b32 v6, 1, v4
    s_mov_b32 s40, 0
    s_movk_i32 s41, {1*1152}
    s_movk_i32 s42, {2*1152}
    s_movk_i32 s43, {3*1152}
    s_movk_i32 s44, {8*1152}
    s_movk_i32 s45, {9*1152}
    s_movk_i32 s46, {10*1152}
    s_movk_i32 s47, {11*1152}
    s_cmp_lt_u32 s34, 18
    s_cbranch_scc1 L_d_o
    """)
    srd(k, 24, 16, 4608*1152)
    k(f"""
    s_sub_u32 s34, s34, 18
    s_mov_b32 s35, 0
    s_cmp_ge_u32 s34, {KS[1]}
    s_cselect_b32 s35, 2, s35
    s_cmp_ge_u32 s34, {KS[2]}
    s_cselect_b32 s35, 4, s35
    s_cmp_ge_u32 s34, {KS[3]}
    s_cselect_b32 s35, 6, s35
    s_mul_i32 s36, s33, 144
    s_add_u32 s36, s36, s34
    s_cmp_ge_u32 s32, 7
    s_cbranch_scc1 L_d_own
    s_mul_i32 s37, s36, 7
    s_add_u32 s37, s37, s32
    s_lshl_b32 s37, s37, 10
    s_add_u32 s37, s37, {WD1}
    s_add_u32 s38, s32, 2
    s_cmp_lt_u32 s32, s35
    s_cselect_b32 s38, s32, s38
    s_branch L_d_h
    L_d_own:
    s_sub_u32 s38, s32, 7
    s_lshl_b32 s37, s36, 1
    s_add_u32 s37, s37, s38
    s_lshl_b32 s37, s37, 10
    s_add_u32 s37, s37, {WD2}
    s_add_u32 s38, s38, s35
    L_d_h:
    s_lshl_b32 s39, s34, 5
    v_lshlrev_b32 v7, 4, v5
    v_lshlrev_b32 v8, 2, v6
    v_add3_u32 v7, v7, v8, s39
    s_branch L_d_go
    L_d_o:
    """)
    srd(k, 24, 10, 576*1152)
    k(f"""
    s_mul_i32 s37, s33, 18
    s_add_u32 s37, s37, s34
    s_mul_i32 s37, s37, 9
    s_add_u32 s37, s37, s32
    s_lshl_b32 s37, s37, 10
    s_add_u32 s37, s37, {WOT}
    s_mov_b32 s38, s32
    s_cmp_ge_u32 s34, 16
    s_cbranch_scc1 L_d_o2
    s_mul_i32 s39, s34, 36
    v_mul_u32_u24 v7, 18, v5
    v_lshlrev_b32 v8, 2, v6
    v_add3_u32 v7, v7, v8, s39
    s_branch L_d_go
    L_d_o2:
    s_sub_u32 s39, s34, 16
    s_mul_i32 s39, s39, {16*18}
    s_add_u32 s39, s39, 16
    v_mul_u32_u24 v7, 72, v4
    v_add_u32 v7, s39, v7
    s_movk_i32 s42, {18*1152}
    s_movk_i32 s43, {19*1152}
    s_mov_b32 s44, {36*1152}
    s_mov_b32 s45, {37*1152}
    s_mov_b32 s46, {54*1152}
    s_mov_b32 s47, {55*1152}
    L_d_go:
    s_movk_i32 s48, 1152
    v_mul_lo_u32 v7, v7, s48
    s_mul_i32 s49, s33, 144
    s_lshl_b32 s38, s38, 4
    s_add_u32 s49, s49, s38
    v_add_u32 v8, s49, v3
    v_lshlrev_b32 v8, 1, v8
    v_add_u32 v7, v7, v8
    """)
    for i in range(8):
        k(f"buffer_load_ushort v{24+i}, v7, s[24:27], s{40+i} offen")
    for i in range(4): k(f"v_lshl_or_b32 v{16+i}, v{25+2*i}, 16, v{24+2*i}")
    k(f"""
    v_lshlrev_b32 v3, 4, v1
    buffer_store_dwordx4 v[16:19], v3, s[20:23], s37 offen
    s_endpgm
    """)
    return k, total
```

```python
from core import *
from layout import *
from weave import *

NPAGE = 20
SCR = 15 * 8192
PHPAGE = 14
LOG2E = 0x3fb8aa3b
RING0 = 48; NRING = 6; DEPTH = 4
E0 = 72
def T(t): return 96 + 16 * t
def vr(a, n): return f"v[{a}:{a+n-1}]"
def xreg(kk, tb):
    n = kk * 2 + tb
    return f"a[{4*n}:{4*n+3}]" if n < 64 else vr(16 + 4 * (n - 64), 4)

def h_unit(src, packed, sbase, off, oq):
    L = []
    t0 = E0 + 8
    for p in range(4):
        a, b = 2 * p, 2 * p + 1
        if packed:
            g = [t0, t0 + 1]; u = [t0 + 2, t0 + 3]
            for n, i in enumerate((a, b)):
                L += Is(f"v_lshlrev_b32 v{g[n]}, 16, v{src+i}\nv_and_b32 v{u[n]}, 0xffff0000, v{src+i}")
        else:
            g = [src + a, src + b]; u = [src + 8 + a, src + 8 + b]
        m = [t0 + 4, t0 + 5]
        L += Is(f"""v_mul_f32 v{m[0]}, s55, v{g[0]}
        v_mul_f32 v{m[1]}, s55, v{g[1]}
        v_exp_f32 v{m[0]}, v{m[0]}
        v_exp_f32 v{m[1]}, v{m[1]}
        v_mul_f32 v{u[0]}, v{g[0]}, v{u[0]}
        v_mul_f32 v{u[1]}, v{g[1]}, v{u[1]}
        v_add_f32 v{m[0]}, 1.0, v{m[0]}
        v_add_f32 v{m[1]}, 1.0, v{m[1]}
        v_rcp_f32 v{m[0]}, v{m[0]}
        v_rcp_f32 v{m[1]}, v{m[1]}
        v_mul_f32 v{u[0]}, v{u[0]}, v{m[0]}
        v_mul_f32 v{u[1]}, v{u[1]}, v{m[1]}
        v_cvt_pk_bf16_f32 v{oq+p}, v{u[0]}, v{u[1]}""")
    L += Is(f"buffer_store_dwordx4 {vr(oq,4)}, v3, s[4:7], s{sbase} offen offset:{off}")
    return L

def softmax(P, X):
    L = []
    mx, mn, a, b, sp, sn = X, X + 1, X + 2, X + 3, X + 4, X + 5
    L += Is(f"v_max3_f32 v{mx}, v{P[0]}, v{P[1]}, v{P[2]}\nv_min3_f32 v{mn}, v{P[0]}, v{P[1]}, v{P[2]}")
    for i in range(3, 17, 2):
        L += Is(f"v_max3_f32 v{mx}, v{mx}, v{P[i]}, v{P[i+1]}\nv_min3_f32 v{mn}, v{mn}, v{P[i]}, v{P[i+1]}")
    L += Is(f"v_max_f32 v{mx}, v{mx}, v{P[17]}\nv_min_f32 v{mn}, v{mn}, v{P[17]}")
    L += Is(f"v_mul_f32 v{a}, s55, v{mx}\nv_mul_f32 v{b}, s53, v{mn}")
    for i in range(18):
        L += Is(f"v_fma_f32 v{E0+i}, v{P[i]}, s53, v{a}\nv_fma_f32 v{P[i]}, v{P[i]}, s55, v{b}")
        L += Is(f"v_exp_f32 v{E0+i}, v{E0+i}\nv_exp_f32 v{P[i]}, v{P[i]}")
        if i == 1: pass
        if i >= 2:
            if i == 2: L += Is(f"v_add_f32 v{sp}, v{E0}, v{E0+1}\nv_add_f32 v{sn}, v{P[0]}, v{P[1]}")
            else: L += Is(f"v_add_f32 v{sp}, v{sp}, v{E0+i-1}\nv_add_f32 v{sn}, v{sn}, v{P[i-1]}")
    L += Is(f"v_mov_b32 v{E0+18}, 0\nv_add_f32 v{sp}, v{sp}, v{E0+17}\nv_add_f32 v{sn}, v{sn}, v{P[17]}")
    L += Is(f"v_rcp_f32 v{sp}, v{sp}\nv_rcp_f32 v{sn}, v{sn}\nv_mov_b32 v{E0+19}, 0")
    for u in range(9):
        L += Is(f"v_mul_f32 v{E0+2*u}, v{E0+2*u}, v{sp}\nv_mul_f32 v{E0+2*u+1}, v{E0+2*u+1}, v{sp}\nv_cvt_pk_bf16_f32 v{E0+u}, v{E0+2*u}, v{E0+2*u+1}")
    for u in range(9):
        L += Is(f"v_mul_f32 v{P[2*u]}, v{P[2*u]}, v{sn}\nv_mul_f32 v{P[2*u+1]}, v{P[2*u+1]}, v{sn}\nv_cvt_pk_bf16_f32 v{E0+9+u}, v{P[2*u]}, v{P[2*u+1]}")
    return L

def build_k2(stamps=False):
    k = Kernel("gemm1_kernel", vgpr=256, agpr=256, sgpr=100)
    nst = [0]
    def stamp():
        if not stamps: return []
        i = nst[0]; nst[0] += 1
        return Is(f"s_memtime s[{64+2*i}:{65+2*i}]")
    k(stamp())
    k(f"""
    s_cmp_ge_u32 s2, 256
    s_cbranch_scc1 L2_end
    s_load_dwordx4 s[8:11], s[0:1], 40
    s_load_dwordx2 s[4:5], s[0:1], 80
    v_lshrrev_b32 v1, 6, v0
    v_and_b32 v0, 63, v0
    v_readfirstlane_b32 s3, v1
    s_and_b32 s54, s2, 7
    s_lshr_b32 s56, s2, 3
    s_and_b32 s12, s54, 1
    s_lshl_b32 s12, s12, 2
    s_and_b32 s57, s56, 3
    s_add_u32 s12, s12, s57
    s_lshr_b32 s13, s54, 1
    s_lshl_b32 s13, s13, 3
    s_lshr_b32 s57, s56, 2
    s_add_u32 s13, s13, s57
    s_lshl_b32 s14, s3, 11
    s_lshr_b32 s58, s3, 1
    s_and_b32 s59, s3, 1
    s_lshl_b32 s15, s58, 12
    s_lshl_b32 s57, s59, 11
    s_add_u32 s15, s15, s57
    s_lshl_b32 s16, s12, 3
    s_lshl_b32 s57, s3, 1
    s_add_u32 s16, s16, s57
    s_mul_i32 s16, s16, {36*1024}
    s_add_u32 s16, s16, {XN}
    s_add_u32 s25, s16, {36*1024}
    """)
    for q in range(1, 9): k(f"s_add_u32 s{16+q}, s16, {4096*q}\ns_add_u32 s{25+q}, s25, {4096*q}")
    k(f"""
    s_mul_i32 s34, s13, {9*8192}
    s_add_u32 s34, s34, s14
    s_add_u32 s34, s34, {W1Q}
    s_mul_i32 s36, s13, {5*8192}
    s_add_u32 s36, s36, s14
    s_add_u32 s36, s36, {W1S}
    s_mul_i32 s37, s59, {32*9216}
    s_lshl_b32 s57, s13, 8
    s_add_u32 s37, s37, s57
    v_lshlrev_b32 v1, 4, v0
    v_lshrrev_b32 v2, 2, v0
    s_movk_i32 s57, 9216
    v_mul_lo_u32 v2, v2, s57
    v_bfe_u32 v3, v0, 1, 1
    v_xor_b32 v3, s58, v3
    v_lshlrev_b32 v3, 5, v3
    v_and_b32 v4, 1, v0
    v_lshlrev_b32 v4, 4, v4
    v_add3_u32 v2, v2, v3, v4
    s_mul_i32 s48, s13, 6144
    s_add_u32 s48, s48, s14
    s_add_u32 s48, s48, {PHIA}
    s_waitcnt lgkmcnt(0)
    s_mov_b32 s6, {WS_BYTES}
    s_mov_b32 s7, 0x20000
    s_cmp_eq_u32 s58, 1
    s_cselect_b32 s8, s10, s8
    s_cselect_b32 s9, s11, s9
    s_mov_b32 s10, {576*9216}
    s_mov_b32 s11, 0x20000
    """)
    def dma_lin(sreg, add, page, tag):
        return Is(f"""s_add_u32 m0, s14, {page*8192}
        s_add_u32 s38, s{sreg}, {add}
        buffer_load_dwordx4 v1, s[4:7], s38 offen lds
        buffer_load_dwordx4 v1, s[4:7], s38 offen offset:1024 lds""", tag)
    def dma_sg(sg, q, pa, pb, tag):
        X = q * 64 * 9216 + sg * 128
        return Is(f"""s_add_u32 m0, s15, {pa*8192}
        s_add_u32 s38, s37, {X}
        buffer_load_dwordx4 v2, s[8:11], s38 offen lds
        s_add_u32 m0, s15, {pb*8192-64 if pb*8192-64 >= 0 else (1<<32)-64}
        s_add_u32 s39, s37, {X + 16*9216 - 1024}
        buffer_load_dwordx4 v2, s[8:11], s38 offen offset:64 lds
        buffer_load_dwordx4 v2, s[8:11], s39 offen offset:1088 lds
        s_add_u32 m0, s15, {pa*8192}
        @nopslot
        buffer_load_dwordx4 v2, s[8:11], s39 offen offset:1024 lds""".replace("@nopslot\n", ""), tag)
    def xloads(q):
        L = []
        for kk in range(4 * q, 4 * q + 4):
            for tb in range(2):
                L += Is(f"buffer_load_dwordx4 {xreg(kk,tb)}, v1, s[4:7], s{(16 if tb == 0 else 25)+q} offen offset:{(kk&3)*1024}")
        return L
    groups = []
    for q in range(9):
        groups.append(("Q", q, q, [q])); groups.append(("SG0", q, q, [q, 9 + q]))
    for p in range(5): groups.append(("S", p, 9 + 2 * p, [9 + min(2 * p + 1, 8)]))
    for q in range(9): groups.append(("SG1", q, 18 + q, [18 + q, 99]))
    page_rel = {p: -9 for p in range(NPAGE)}
    page_rel[PHPAGE] = 18
    page_rel[0] = -9
    pageof = {}
    issue_at = {}
    LOOK = 4
    gi = 0
    for t in range(-1, 27):
        L = []
        while gi < len(groups):
            name, q, need, rels = groups[gi]
            if need > (t + LOOK if t >= 0 else 0) and name in ("Q", "SG0"): break
            if need > t + 7: break
            free = [p for p in range(NPAGE) if page_rel[p] <= t - 2]
            got = []
            for r in rels:
                cand = [p for p in free if p not in got and (p < 15 or r <= 9) and not (p == 0 and name.startswith("SG") and len(got) == 1)]
                if not cand: got = None; break
                cand.sort(key=lambda p: (0 if (p >= 15) else 1, p))
                got.append(cand[0])
            if got is None: break
            for p, r in zip(got, rels): page_rel[p] = r
            tag = f"st{need}"
            if name == "Q": pageof[("Q", q)] = got[0]; L += dma_lin(34, q * 8192, got[0], tag)
            elif name == "S": pageof[("S", q)] = got[0]; L += dma_lin(36, q * 8192, got[0], tag)
            else:
                sg = int(name[2]); pageof[("A", sg, q)] = got[0]; pageof[("B", sg, q)] = got[1]
                L += dma_sg(sg, q, got[0], got[1], tag)
                if sg == 0: L += xloads(q)
                if sg == 0 and q == 1:
                    L += Is(f"s_add_u32 m0, s14, {PHPAGE*8192}\nbuffer_load_dwordx4 v1, s[4:7], s48 offen lds\nbuffer_load_dwordx4 v1, s[4:7], s48 offen offset:1024 lds", "st3")
            assert need > t, (name, q, need, t)
            L.append(('BY', need))
            gi += 1
        issue_at[t] = L
    assert gi == len(groups)
    k.alloc = (pageof, {t: len([x for x in L if isinstance(x, Ins) and x.kind in VMK]) for t, L in issue_at.items()})
    k([x for x in issue_at[-1] if isinstance(x, Ins)])
    k(f"""
    v_bfe_u32 v4, v0, 4, 1
    s_mov_b32 s57, {HXROW}
    v_mul_lo_u32 v4, v4, s57
    v_and_b32 v13, 15, v0
    v_lshl_add_u32 v4, v13, 4, v4
    v_lshrrev_b32 v14, 5, v0
    v_lshl_add_u32 v3, v14, 8, v4
    v_cmp_eq_u32 vcc, 0, v14
    v_mov_b32 v15, {OOB}
    v_cndmask_b32 v4, v15, v4, vcc
    v_bfe_u32 v15, v0, 4, 1
    v_lshlrev_b32 v5, 12, v15
    v_lshl_add_u32 v5, v14, 9, v5
    v_bfe_u32 v6, v0, 2, 2
    v_lshl_add_u32 v5, v6, 6, v5
    v_and_b32 v6, 3, v0
    v_lshl_add_u32 v5, v6, 3, v5
    v_xor_b32 v6, 1, v15
    v_lshl_add_u32 v6, v6, 5, v5
    v_lshl_add_u32 v5, v15, 5, v5
    v_add_u32 v7, 0x10000, v5
    v_add_u32 v8, 0x10000, v6
    v_add_u32 v9, 0x20000, v5
    v_add_u32 v10, 0x20000, v6
    s_mul_i32 s60, s3, 10240
    s_add_u32 s60, s60, {SCR}
    v_and_b32 v11, 31, v0
    v_mul_u32_u24 v11, 160, v11
    v_add_u32 v11, s60, v11
    v_lshrrev_b32 v12, 2, v0
    v_mul_u32_u24 v12, 160, v12
    v_and_b32 v15, 3, v0
    v_lshl_add_u32 v12, v15, 3, v12
    v_add_u32 v12, s60, v12
    v_and_b32 v15, 31, v0
    v_min_u32 v15, 18, v15
    v_lshrrev_b32 v13, 4, v15
    v_mul_u32_u24 v13, 3072, v13
    v_and_b32 v15, 15, v15
    v_lshl_add_u32 v13, v15, 4, v13
    v_lshl_add_u32 v13, v14, 8, v13
    s_lshl_b32 s40, s12, 4
    s_lshl_b32 s57, s3, 2
    s_add_u32 s40, s40, s57
    s_mul_i32 s40, s40, {HXROW}
    s_add_u32 s40, s40, {HX}
    s_lshr_b32 s57, s13, 1
    s_lshl_b32 s57, s57, 10
    s_and_b32 s56, s13, 1
    s_lshl_b32 s56, s56, 9
    s_add_u32 s57, s57, s56
    s_add_u32 s44, s40, s57
    s_add_u32 s42, s44, {(18+128)*1024}
    s_lshr_b32 s57, s13, 4
    s_lshl_b32 s57, s57, 10
    s_add_u32 s46, s40, s57
    s_and_b32 s57, s13, 15
    s_lshr_b32 s57, s57, 2
    s_lshl_b32 s57, s57, 8
    s_add_u32 s46, s46, s57
    s_and_b32 s57, s13, 3
    s_lshl_b32 s57, s57, 2
    s_add_u32 s46, s46, s57
    s_add_u32 s46, s46, {16*1024}
    s_lshl_b32 s57, s13, 12
    s_add_u32 s40, s40, s57
    s_add_u32 s40, s40, {18*1024}
    s_add_u32 s41, s40, {2*HXROW}
    s_add_u32 s43, s42, {2*HXROW}
    s_add_u32 s45, s44, {2*HXROW}
    s_add_u32 s47, s46, {2*HXROW}
    s_lshl_b32 s49, s2, 2
    s_add_u32 s49, s49, s3
    s_mul_i32 s49, s49, 10240
    s_add_u32 s49, s49, {PHQ}
    s_mul_i32 s51, s13, {8*6144}
    s_add_u32 s51, s51, {KVP}
    s_mul_i32 s50, s12, 6144
    s_add_u32 s50, s50, s51
    s_min_u32 s57, s3, 2
    s_lshl_b32 s57, s57, 10
    s_add_u32 s50, s50, s57
    s_add_u32 s61, s57, {SCR}
    s_lshl_b32 s52, s13, 7
    s_add_u32 s52, s52, {FLG2}
    s_mov_b32 s53, {LOG2E}
    s_mov_b32 s55, {LOG2E | 0x80000000}
    s_mov_b32 s62, 0
    s_mov_b32 s63, -1
    """)
    frags = []
    def add(t, page, kk, seg, tups):
        frags.append((t, page * 8192 + (kk & 3) * 1024, seg, kk, tups))
    for kk in range(36):
        q = kk >> 2
        add(q, pageof[("Q", q)], kk, 0, (0, 2)); add(q, pageof[("Q", q)], kk, 1, (1, 3))
        add(q, pageof[("A", 0, q)], kk, 0, (4, 5)); add(q, pageof[("A", 0, q)], kk, 1, (6, 7))
    def ph2(kk, b):
        q = kk >> 2
        if b < 2: add(9 + q, pageof[("B", 0, q)], kk, b, ((8, 9), (1, 3))[b])
        else: add(9 + q, pageof[("S", q >> 1)], kk, q & 1, (5, 7))
    n_ph2 = len(frags)
    for b in range(3):
        for kk in range(3): ph2(kk, b)
    for kk in range(3, 36):
        for b in range(3): ph2(kk, b)
    n_ph3 = len(frags)
    for kk in range(36):
        q = kk >> 2
        add(18 + q, pageof[("A", 1, q)], kk, 0, (0, 2)); add(18 + q, pageof[("A", 1, q)], kk, 1, (4, 6))
    n_ph4a = len(frags)
    for kk in range(36): add(27, pageof[("B", 1, kk >> 2)], kk, 0, (8, 9))
    n_ph4b = len(frags)
    for kk in range(36): add(27, pageof[("B", 1, kk >> 2)], kk, 1, (1, 3))
    NF = len(frags)
    def rd(n, h):
        t, base, seg, kk, _ = frags[n]
        a = base + h * 256
        r = RING0 + 4 * (n % NRING) + 2 * h
        return I(f"ds_read_b64_tr_b16 v[{r}:{r+1}], v{5 + 2*(a >> 16) + seg} offset:{a & 0xffff}")
    main = []; pre = {}; post = {}
    for n, (t, base, seg, kk, tups) in enumerate(frags):
        r = RING0 + 4 * (n % NRING)
        for tb in range(2):
            d = vr(T(tups[tb]), 16)
            main.append(I(f"v_mfma_f32_32x32x16_bf16 {d}, {vr(r,4)}, {xreg(kk,tb)}, {'0' if kk == 0 else d}"))
    bar_idx = {}
    ioq = deque()
    k(stamp())
    k("@waitvm st0\ns_barrier")
    for n in range(DEPTH): k([rd(n, 0), rd(n, 1)])
    ioq.extend(issue_at[0])
    extra_bar = {}
    cur = 0
    for n in range(NF - DEPTH):
        m = n + DEPTH
        t = frags[m][0]
        p0 = post.setdefault(2 * n, []); p1 = post.setdefault(2 * n + 1, [])
        if t != cur and t <= 26:
            cur = t; bar_idx[t] = 2 * n
            p0.append(("BAR", t))
        p0.append(rd(m, 0)); p1.append(rd(m, 1))
    bg = deque()
    M2, M3, M4a, M4b = 2 * n_ph2, 2 * n_ph3, 2 * n_ph4a, 2 * n_ph4b
    bg.append(After(M2 - 3))
    for tb in range(2):
        a, b = T(2 * tb), T(2 * tb + 1)
        for i in range(8): bg.append(I(f"v_cvt_pk_bf16_f32 v{a+i}, v{a+2*i}, v{a+2*i+1}"))
        for i in range(8): bg.append(I(f"v_cvt_pk_bf16_f32 v{a+8+i}, v{b+2*i}, v{b+2*i+1}"))
    bg.append(By(M2 + 6))
    bg.append(After(M2 + 1))
    for a, b in ((T(4), T(5)), (T(6), T(7))):
        for i in range(8): bg.append(I(f"v_cvt_pk_bf16_f32 v{a+i}, v{a+i}, v{a+8+i}"))
        for i in range(8): bg.append(I(f"v_cvt_pk_bf16_f32 v{a+8+i}, v{b+i}, v{b+8+i}"))
    bg.append(By(M2 + 12))
    oq = [0]
    def nq():
        oq[0] ^= 1; return E0 + 4 * oq[0]
    for s in range(2):
        for tb in range(2): bg.extend(h_unit(T(4 + 2 * s) + 8 * tb, True, 40 + tb, s * 512, nq()))
    bg.append(After(bar_idx[11]))
    bg.append(I(f"v_mov_b32 v15, 0x3f80"))
    for tb in range(2):
        Q = T(2 * tb)
        for f in range(6):
            a = PHPAGE * 8192 + f * 1024
            bg.append(I(f"v_add_u32 v14, {PHPAGE*8192}, v1")) if (tb == 0 and f == 0) else None
            bg.append(I(f"ds_read_b128 {vr(E0+4*f,4)}, v14 offset:{f*1024}"))
        bg.append(I(f"v_lshrrev_b32 v{T(6)}, 5, v0"))
        bg.append(I(f"v_lshl_add_u32 v{T(6)}, v{T(6)}, 3, v11"))
        bg.append(I(f"ds_write2_b64 v{T(6)}, {vr(Q+12,2)}, {vr(Q+14,2)} offset0:{(tb*5120+96)//8 if tb == 0 else 0} offset1:{(tb*5120+96+16)//8 if tb == 0 else 2}") if tb == 0 else
                  Group(Is(f"v_add_u32 v{T(6)}, {5120+96}, v{T(6)}\nds_write2_b64 v{T(6)}, {vr(Q+12,2)}, {vr(Q+14,2)} offset0:0 offset1:2")))
        bg.append(Group(Is(f"s_mov_b64 exec, s[62:63]\nds_write_b32 v11, v{Q+8} offset:{tb*5120+128}\nds_write_b32 v11, v15 offset:{tb*5120+132}\ns_mov_b64 exec, -1")))
        bg.append(Skip(2))
        for ob in range(2):
            d = vr(T(4 + 2 * ob), 16)
            for hb in range(3):
                bg.append(I(f"v_mfma_f32_32x32x16_bf16 {d}, {vr(E0+4*(3*ob+hb),4)}, {vr(Q+4*hb,4)}, {'0' if hb == 0 else d}"))
        bg.append(Skip(2))
        P = [T(4) + i for i in range(16)] + [T(6), T(6) + 1]
        bg.extend(softmax(P, T(6) + 2))
        for m in range(5):
            bg.append(I(f"buffer_store_dwordx4 {vr(E0+4*m,4)}, v1, s[4:7], s49 offen offset:{m*1024}" if (tb == 0 and m < 4) else
                        f"buffer_store_dwordx4 {vr(E0+4*m,4)}, v1, s[4:7], s54 offen offset:{(tb*5+m-4)*1024 if tb*5+m-4 < 4 else (tb*5+m-8)*1024}", "stash"))
            if tb * 5 + m == 3: bg.append(I("s_add_u32 s54, s49, 4096"))
            if tb * 5 + m == 7: bg.append(I("s_add_u32 s54, s49, 8192"))
        g = Is("s_mov_b64 exec, s[62:63]")
        for m in range(4): g += Is(f"ds_write_b128 v11, {vr(E0+4*m,4)} offset:{tb*5120+16*m}")
        g += Is(f"ds_write_b64 v11, {vr(E0+16,2)} offset:{tb*5120+64}\ns_mov_b64 exec, -1")
        bg.append(Group(g))
    accr = [T(6), T(6) + 4, T(6) + 8, T(6) + 12, T(0) + 12, T(2) + 12]
    for r in range(2):
        for seg in (0, 3, 4, 1, 2):
            d = T(2 * r) + 4 * seg if seg < 3 else T(4) + 8 * r + 4 * (seg - 3)
            for h in range(2):
                bg.append(I(f"ds_read_b64_tr_b16 {vr(d+2*h,2)}, v12 offset:{r*5120 + seg*32 + h*2560}"))
    bg.append(Skip(2))
    for r in range(2):
        for rb in range(3):
            for cb in range(2):
                d = vr(accr[cb * 3 + rb], 4)
                bg.append(I(f"v_mfma_f32_16x16x32_bf16 {d}, {vr(T(2*r)+4*rb,4)}, {vr(T(4)+8*r+4*cb,4)}, {'0' if r == 0 else d}"))
    bg.append(I(f"v_add_u32 v14, s60, v1"))
    bg.append(Skip(1))
    for sl in range(6): bg.append(I(f"ds_write_b128 v14, {vr(accr[sl],4)} offset:{sl*1024}", "red"))
    bg.append(By(M3))
    extra_bar[19] = ["@waitlgkm red"]
    bg.append(After(M3 + 1))
    for tb in range(2): bg.extend(h_unit(T(8 + tb), False, 40 + tb, 1024, nq()))
    bg.append(After(bar_idx[19]))
    bg.append(I(f"v_add_u32 v14, s61, v1"))
    R0 = T(8)
    for cb in range(2):
        for src in range(4): bg.append(I(f"ds_read_b128 {vr(R0+16*cb+4*src,4)}, v14 offset:{src*10240+cb*3072}"))
    bg.append(Skip(2))
    for cb in range(2):
        b = R0 + 16 * cb
        for i in range(4): bg.extend(Is(f"v_add_f32 v{b+i}, v{b+i}, v{b+4+i}\nv_add_f32 v{b+8+i}, v{b+8+i}, v{b+12+i}"))
        for i in range(4): bg.append(I(f"v_add_f32 v{b+i}, v{b+i}, v{b+8+i}"))
        bg.append(I(f"buffer_store_dwordx4 {vr(b,4)}, v1, s[4:7], s50 offen offset:{cb*3072} sc1", "kvp"))
    for tb in range(2): bg.extend(h_unit(T(1 + 2 * tb), False, 40 + tb, 1024 + 512, nq()))
    bg.append(I("v_mov_b32 v15, 1"))
    bg.append(Group(Is("@waitvm kvp\ns_mov_b64 exec, 1\nbuffer_atomic_add v15, off, s[4:7], s52 sc1\ns_mov_b64 exec, -1")))
    for tb in range(2): bg.extend(h_unit(T(5 + 2 * tb), False, 42 + tb, 0, nq()))
    bg.append(By(M4a))
    bg.append(After(M4a + 1))
    for s in range(2):
        for tb in range(2):
            bg.extend(h_unit(T(4 * s + 2 * tb), False, 40 + tb, 2048 + s * 512, nq()))
            if s == 1 and tb == 0: bg.append(I("buffer_load_dword v15, off, s[4:7], s52 sc1"))
    bg.append(Group(Is("v_readfirstlane_b32 s54, v15\ns_cmp_ge_u32 s54, 32\ns_cbranch_scc0 L2_spin\nL2_back:")))
    S = [T(5), T(5) + 4, T(5) + 8, T(5) + 12, T(7)]
    BUF = [[T(0), T(0) + 4, T(0) + 8, T(0) + 12, T(2)], [T(4), T(4) + 4, T(4) + 8, T(4) + 12, T(2) + 4], [T(6), T(6) + 4, T(6) + 8, T(6) + 12, T(2) + 8]]
    def gl(part, dst):
        L = Is(f"s_add_u32 s54, s51, {part*6144}")
        for m in range(5): L += Is(f"buffer_load_dwordx4 {vr(dst[m],4)}, v13, s[4:7], s54 offen offset:{(m>>1)*1024+(m&1)*512} sc1")
        return L
    bg.extend(gl(0, S))
    for p in range(1, 4): bg.extend(gl(p, BUF[p - 1]))
    bg.append(After(M4b + 1))
    bg.extend(h_unit(T(8), False, 40, 3072, nq()))
    for p in range(1, 8):
        b = BUF[(p - 1) % 3]
        for m in range(5):
            for i in range(4): bg.append(I(f"v_add_f32 v{S[m]+i}, v{S[m]+i}, v{b[m]+i}"))
        if p + 3 < 8: bg.extend(gl(p + 3, b))
        if p == 3: bg.extend(h_unit(T(9), False, 41, 3072, nq()))
    bg.append(I("@waitvm stash"))
    for tb in range(2):
        for m in range(5):
            n = tb * 5 + m
            if n % 4 == 0: bg.append(I(f"s_add_u32 s54, s49, {n*1024}"))
            bg.append(I(f"buffer_load_dwordx4 {vr(BUF[tb][m],4)}, v1, s[4:7], s54 offen offset:{(n%4)*1024}"))
    for m in range(5):
        s = S[m]
        bg.extend(Is(f"v_cvt_pk_bf16_f32 v{s}, v{s}, v{s+1}\nv_cvt_pk_bf16_f32 v{s+1}, v{s+2}, v{s+3}\nv_mov_b32 v{s+2}, 0\nv_mov_b32 v{s+3}, 0"))
    for m in range(5):
        s = S[m]
        bg.extend(Is(f"v_permlane32_swap_b32 v{s}, v{s+2}\nv_permlane32_swap_b32 v{s+1}, v{s+3}"))
    bg.extend(Is(f"v_mov_b32 v{S[4]+2}, 0\nv_mov_b32 v{S[4]+3}, 0"))
    bg.append(Skip(1))
    OC = [T(6), T(8)]
    for tb in range(2):
        d = vr(OC[tb], 16)
        for m in range(5):
            bg.append(I(f"v_mfma_f32_32x32x16_bf16 {d}, {vr(S[m],4)}, {vr(BUF[tb][m],4)}, {'0' if m == 0 else d}"))
    bg.append(Skip(2))
    for tb in range(2):
        c = OC[tb]
        bg.extend(Is(f"v_add_f32 v{c+10}, 0x358637bd, v{c+10}\nv_rcp_f32 v{c+10}, v{c+10}\nv_nop"))
        for i in range(10): bg.append(I(f"v_mul_f32 v{c+i}, v{c+i}, v{c+10}"))
        for i in range(5): bg.append(I(f"v_cvt_pk_bf16_f32 v{c+12+i if i < 4 else c+11}, v{c+2*i}, v{c+2*i+1}"))
        bg.append(I(f"buffer_store_dwordx4 {vr(c+12,4)}, v3, s[4:7], s{44+tb} offen"))
        bg.append(I(f"buffer_store_dword v{c+11}, v4, s[4:7], s{46+tb} offen"))
    for idx in sorted(post):
        L = []
        for x in post[idx]:
            if isinstance(x, tuple):
                t = x[1]
                L += Is("\n".join(extra_bar.get(t, []) + [f"@waitvm st{t}", "s_barrier"]))
                if stamps and t in (1, 9, 18): L += stamp()
                ioq.append(After(idx)); ioq.extend(issue_at[t])
            else: L.append(x)
        post[idx] = L
    if stamps:
        post.setdefault(M4a, []).extend(stamp())
    ioq = deque(By(bar_idx[x[1]]) if isinstance(x, tuple) else x for x in ioq)
    out = []
    weave(out, main, pre, post, [ioq, bg], lambda m: (5, 6) if m.passes == 8 else (2, 2), vmgap=64, reserve=lambda i: 1 if i % 2 == 1 else 0)
    k(out)
    k(stamp())
    for tb in range(2): k(h_unit(T(1 + 2 * tb), False, 40 + tb, 3072 + 512, nq()))
    if stamps:
        k(stamp())
        k("@waitvmall")
        k(stamp())
        k(f"s_waitcnt lgkmcnt(0)\ns_lshl_b32 s54, s2, 2\ns_add_u32 s54, s54, s3\ns_lshl_b32 s54, s54, 7\ns_add_u32 s54, s54, {STAMP + (1<<20)}")
        for i in range(nst[0]):
            k(f"v_mov_b32 v16, s{64+2*i}\nv_mov_b32 v17, s{65+2*i}\nbuffer_store_dwordx2 v[16:17], off, s[4:7], s54 offset:{8*i}\ns_nop 1")
    k("""
    L2_end:
    s_endpgm
    L2_spin:
    @reset
    s_mov_b32 s56, 200000
    L2_spin2:
    s_sleep 2
    buffer_load_dword v15, off, s[4:7], s52 sc1
    s_waitcnt vmcnt(0)
    v_readfirstlane_b32 s54, v15
    s_cmp_ge_u32 s54, 32
    s_cbranch_scc1 L2_back
    s_sub_u32 s56, s56, 1
    s_cmp_eq_u32 s56, 0
    s_cbranch_scc0 L2_spin2
    s_branch L2_back
    """)
    k.nstamps = nst[0]
    return k
```

```python
from core import *
from layout import *
from weave import *

LDS3 = 160 * 1024
RING0 = 8; NRING = 8; DEPTH = 6
BV0 = 40
ACC1 = 112
ACC2 = 184
TM = 200
LOG2E = 0x3fb8aa3b
def vr(a, n): return f"v[{a}:{a+n-1}]"
def breg(step, tb):
    n = step * 2 + tb
    return f"a[{4*n}:{4*n+3}]" if n < 64 else vr(BV0 + 4 * (n - 64), 4)

def program(k, first, stamp, lab):
    nh = 21 if first else 41
    b0 = 18 if first else 0
    stages = []
    if first:
        for s0 in range(0, 18, 4): stages.append((0, 23, s0 * 9 * 1024, min(4, 18 - s0), 9, s0))
    for s0 in range(0, nh, 4): stages.append((1, 24, s0 * 7 * 1024, min(4, nh - s0), 7, s0))
    for s0 in range(0, nh, 8): stages.append((2, 25, s0 * 2 * 1024, min(8, nh - s0), 2, s0))
    NS = len(stages)
    addr = {}; live = []
    issue_at = {}
    head = [0]
    def try_alloc(sz, t):
        alive = [(a, b) for (a, b, s) in live if s > t - 2]
        for cand in (head[0], 0):
            if cand + sz <= LDS3 and all(cand + sz <= a or cand >= b for a, b in alive):
                return cand
        return None
    def dma(si):
        ph, sreg, off, ns, nb, s0 = stages[si]
        sz = ns * nb * 1024; bw = sz // 4; n = -(-bw // 1024)
        wreg = {7168: 26, 9216: 27, 4096: 28}.get(bw)
        L = []
        if wreg is None:
            L += Is(f"s_mul_i32 s29, s3, {bw}"); wreg = 29
        for i in range(n):
            if i % 4 == 0:
                L += Is(f"s_add_u32 m0, s{wreg}, {addr[si] + i*1024}\ns_add_u32 s38, s{wreg}, {off + i*1024}\ns_add_u32 s38, s38, s{sreg}")
            L += Is(f"buffer_load_dwordx4 v1, s[4:7], s38 offen offset:{(i%4)*1024} lds", f"st{si}")
        if ph < 2:
            bs = s0 + (b0 if ph == 1 else 0)
            B = Is(f"s_add_u32 s39, s20, {bs*1024}\ns_add_u32 s37, s21, {bs*1024}")
            for st in range(ns):
                for tb in range(2):
                    B += Is(f"buffer_load_dwordx4 {breg(bs+st,tb)}, v1, s[4:7], s{39 if tb == 0 else 37} offen offset:{st*1024}")
            L += B
        return L
    si = 0
    for t in range(-1, NS):
        L = []
        while si < NS and si <= t + 3 + (1 if t >= 0 else -2):
            ph, sreg, off, ns, nb, s0 = stages[si]
            sz = ns * nb * 1024 + (1024 if (ns * nb * 256) % 1024 else 0)
            a = try_alloc(sz, t)
            if a is None: break
            addr[si] = a; live.append((a, a + sz, si)); head[0] = a + sz
            L += dma(si) + [('BY', si)]; si += 1
        assert si > t + 1 or si == NS, (t, si)
        issue_at[t] = L
    k([x for x in issue_at[-1] if isinstance(x, Ins)])
    frags = []
    for si, (ph, sreg, off, ns, nb, s0) in enumerate(stages):
        for st in range(ns):
            for p in range(nb):
                acc = (ACC2 if ph == 2 else ACC1) + 8 * p
                frags.append((si, addr[si] + (st * nb + p) * 1024, acc, s0 + st + (b0 if ph > 0 else 0), s0 + st == 0))
    NF = len(frags)
    def rd(n):
        a = frags[n][1]; r = RING0 + 4 * (n % NRING)
        return I(f"ds_read_b128 {vr(r,4)}, v{2 + (a >> 16)} offset:{a & 0xffff}")
    main = []; post = {}
    for n, (si, a, acc, bstep, zero) in enumerate(frags):
        r = RING0 + 4 * (n % NRING)
        for tb in range(2):
            d = vr(acc + 4 * tb, 4)
            main.append(I(f"v_mfma_f32_16x16x32_bf16 {d}, {vr(r,4)}, {breg(bstep,tb)}, {'0' if zero else d}"))
    k(stamp())
    k("@waitvm st0\ns_barrier")
    for n in range(DEPTH): k(rd(n))
    ioq = deque(issue_at[0])
    cur = 0; bar_idx = {}
    for n in range(NF - DEPTH):
        m = n + DEPTH; t = frags[m][0]
        p0 = post.setdefault(2 * n, [])
        if t != cur:
            cur = t; bar_idx[t] = 2 * n
            p0 += Is(f"@waitvm st{t}\ns_barrier")
            ioq.append(After(2 * n)); ioq.extend(issue_at[t])
        p0.append(rd(m))
    ioq = deque(By(bar_idx[x[1]]) if isinstance(x, tuple) else x for x in ioq)
    M1 = 2 * next(n for n, f in enumerate(frags) if stages[f[0]][0] == 1)
    M2 = 2 * next(n for n, f in enumerate(frags) if stages[f[0]][0] == 2)
    bg = deque()
    def send(acc, q, soff, off):
        L = []
        for i in range(4): L += Is(f"v_cvt_pk_bf16_f32 v{q+i}, v{acc+2*i}, v{acc+2*i+1}")
        L += Is(f"buffer_store_dwordx4 {vr(q,4)}, v1, s[4:7], s{soff} offen offset:{off} sc1", "send")
        return L
    if first:
        bg.append(After(M1 - 1))
        for b in range(9):
            for i in range(4): bg.append(I(f"v_cvt_pk_bf16_f32 v{TM+4*b+i}, v{ACC1+8*b+2*i}, v{ACC1+8*b+2*i+1}"))
            if b < 7: bg.append(By(M1 + 2 * b))
        for b in range(9):
            if b % 4 == 0: bg.append(I(f"s_add_u32 s36, s46, {b*1024}"))
            bg.append(I(f"buffer_store_dwordx4 {vr(TM+4*b,4)}, v1, s[4:7], s36 offen offset:{(b%4)*1024} sc1", "send"))
    if stamp.on: post.setdefault(M2, []).extend(stamp())
    bg.append(After(M2 + 1))
    for p in range(7): bg.extend(send(ACC1 + 8 * p, TM + 4 * p, 30 + p if p < 6 else 47, 0))
    XR = TM + 28
    for b in range(3):
        for tb in range(2):
            bg.append(I(f"buffer_load_dwordx2 {vr(XR+4*b+2*tb,2)}, v5, s[8:11], s{(48 if b < 2 else 50)+tb} offen offset:{32*b if b < 2 else 0}"))
    bg.append(I("v_mov_b32 v6, 1"))
    bg.append(After(M2 + (len(main) - M2) // 2))
    bg.append(Group(Is("@waitvm send\ns_mov_b64 exec, 1\nbuffer_atomic_add v6, off, s[4:7], s52 sc1\ns_mov_b64 exec, -1")))
    out = []
    weave(out, main, {}, post, [ioq, bg], lambda m: (2, 2), vmgap=64, reserve=lambda i: 1 if i % 2 == 1 else 0)
    k(out)
    k(stamp())
    k(f"""
    s_mov_b32 s56, 400000
    {lab}_poll:
    buffer_load_dword v6, off, s[4:7], s52 sc1
    s_waitcnt vmcnt(0)
    v_readfirstlane_b32 s54, v6
    s_cmp_ge_u32 s54, 16
    s_cbranch_scc1 {lab}_go
    s_sub_u32 s56, s56, 1
    s_cmp_eq_u32 s56, 0
    s_cbranch_scc0 {lab}_poll
    {lab}_go:
    """)
    k(stamp())
    k(f"s_branch L3_fin")

def fin_unit(acc, parts, sreg, xreg, soff, off, t):
    L = []
    for i in range(4):
        sel = "s58" if i % 2 == 0 else "s59"
        for n, p in enumerate(parts):
            d = acc + i if acc is not None else t + 8 + i
            c = f"v{d}" if (acc is not None or n > 0) else "0"
            L += Is(f"v_dot2_f32_bf16 v{d}, v{p + i//2}, {sel}, {c}")
    f = acc if acc is not None else t + 8
    for i in range(4): L += Is(f"v_mul_f32 v{t+i}, s55, v{f+i}")
    for i in range(4): L += Is(f"v_exp_f32 v{t+i}, v{t+i}")
    for i in range(4):
        L += Is(f"v_lshlrev_b32 v{t+4+i}, 16, v{sreg+i//2}" if i % 2 == 0 else f"v_and_b32 v{t+4+i}, 0xffff0000, v{sreg+i//2}")
    for i in range(4): L += Is(f"v_add_f32 v{t+i}, 1.0, v{t+i}")
    for i in range(4): L += Is(f"v_rcp_f32 v{t+i}, v{t+i}")
    for i in range(4): L += Is(f"v_mul_f32 v{f+i}, v{f+i}, v{t+4+i}")
    for i in range(4):
        L += Is(f"v_lshlrev_b32 v{t+4+i}, 16, v{xreg+i//2}" if i % 2 == 0 else f"v_and_b32 v{t+4+i}, 0xffff0000, v{xreg+i//2}")
    for i in range(4): L += Is(f"v_fma_f32 v{f+i}, v{f+i}, v{t+i}, v{t+4+i}")
    L += Is(f"v_cvt_pk_bf16_f32 v{t+12}, v{f}, v{f+1}\nv_cvt_pk_bf16_f32 v{t+13}, v{f+2}, v{f+3}")
    L += Is(f"buffer_store_dwordx2 {vr(t+12,2)}, v5, s[12:15], s{soff} offen offset:{off}")
    return L

def build_k3(stamps=False):
    k = Kernel("gemm2_kernel", vgpr=256, agpr=256, sgpr=100)
    nst = [0]
    def stamp():
        if not stamps: return []
        i = nst[0]; nst[0] += 1
        return Is(f"s_memtime s[{64+2*i}:{65+2*i}]")
    stamp.on = stamps
    k(stamp())
    k(f"""
    s_cmp_ge_u32 s2, 256
    s_cbranch_scc1 L3_end
    s_load_dwordx2 s[8:9], s[0:1], 0
    s_load_dwordx2 s[12:13], s[0:1], 64
    s_load_dwordx2 s[4:5], s[0:1], 80
    v_lshrrev_b32 v1, 6, v0
    v_and_b32 v0, 63, v0
    v_readfirstlane_b32 s3, v1
    s_and_b32 s54, s2, 7
    s_lshr_b32 s56, s2, 3
    s_lshr_b32 s18, s54, 1
    s_and_b32 s16, s54, 1
    s_lshl_b32 s16, s16, 3
    s_and_b32 s57, s56, 7
    s_add_u32 s16, s16, s57
    s_lshr_b32 s17, s56, 3
    s_mov_b32 s19, {KS[0]}
    s_cmp_eq_u32 s18, 1
    s_cselect_b32 s19, {KS[1]}, s19
    s_cmp_eq_u32 s18, 2
    s_cselect_b32 s19, {KS[2]}, s19
    s_cmp_eq_u32 s18, 3
    s_cselect_b32 s19, {KS[3]}, s19
    s_lshl_b32 s20, s16, 3
    s_lshl_b32 s57, s3, 1
    s_add_u32 s22, s20, s57
    s_mul_i32 s20, s22, {HXROW}
    s_add_u32 s20, s20, {HX}
    s_add_u32 s57, s19, 18
    s_cmp_eq_u32 s18, 0
    s_cselect_b32 s57, 0, s57
    s_lshl_b32 s57, s57, 10
    s_add_u32 s20, s20, s57
    s_add_u32 s21, s20, {HXROW}
    s_mul_i32 s23, s17, {18*9*1024}
    s_add_u32 s23, s23, {WOT}
    s_mul_i32 s57, s17, 144
    s_add_u32 s57, s57, s19
    s_mul_i32 s24, s57, 7168
    s_add_u32 s24, s24, {WD1}
    s_lshl_b32 s25, s57, 11
    s_add_u32 s25, s25, {WD2}
    s_mul_i32 s26, s3, 7168
    s_mul_i32 s27, s3, 9216
    s_lshl_b32 s28, s3, 12
    v_lshlrev_b32 v1, 4, v0
    v_mov_b32 v2, v1
    v_add_u32 v3, 0x10000, v1
    v_add_u32 v4, 0x20000, v1
    s_lshl_b32 s53, s16, 2
    s_add_u32 s53, s53, s17
    s_lshl_b32 s52, s53, 7
    s_add_u32 s52, s52, {FLG3}
    s_mul_i32 s45, s53, {16*9216}
    s_add_u32 s45, s45, s27
    s_add_u32 s45, s45, {XCH}
    s_mul_i32 s46, s53, {4*9216}
    s_add_u32 s46, s46, s27
    s_add_u32 s46, s46, {SXC}
    s_mul_i32 s57, s18, {4*9216}
    s_add_u32 s44, s45, s57
    s_lshl_b32 s60, s18, 1
    """)
    for p in range(6):
        k(f"s_cmp_gt_u32 s60, {p}\ns_cselect_b32 s57, {p}, {p+2}\ns_lshl_b32 s57, s57, 10\ns_add_u32 s{30+p}, s44, s57")
    k(f"s_add_u32 s47, s44, 8192\ns_lshl_b32 s61, s60, 10")
    for n in range(3):
        k(f"s_add_u32 s57, s18, {n+1}\ns_and_b32 s57, s57, 3\ns_mul_i32 s57, s57, {4*9216}\ns_add_u32 s57, s57, s45\ns_add_u32 s{40+n}, s57, s61")
    k(f"""
    s_add_u32 s43, s46, s61
    v_and_b32 v5, 15, v0
    v_mul_u32_u24 v5, 1152, v5
    v_lshrrev_b32 v6, 4, v0
    v_lshl_add_u32 v5, v6, 3, v5
    s_mul_i32 s48, s22, {16*1152}
    s_mul_i32 s57, s17, 288
    s_add_u32 s48, s48, s57
    s_add_u32 s50, s48, 256
    s_lshl_b32 s57, s18, 6
    s_add_u32 s48, s48, s57
    s_add_u32 s49, s48, {16*1152}
    s_add_u32 s51, s50, {16*1152}
    s_mov_b32 s55, {LOG2E | 0x80000000}
    s_mov_b32 s58, 0x00003f80
    s_mov_b32 s59, 0x3f800000
    s_waitcnt lgkmcnt(0)
    s_mov_b32 s6, {WS_BYTES}
    s_mov_b32 s7, 0x20000
    s_mov_b32 s10, {2048*1152}
    s_mov_b32 s11, 0x20000
    s_mov_b32 s14, {2048*1152}
    s_mov_b32 s15, 0x20000
    s_cmp_eq_u32 s18, 0
    s_cbranch_scc1 L3_first
    """)
    base = nst[0]
    program(k, False, stamp, "L3a")
    k("L3_first:\n@reset")
    nst[0] = base
    program(k, True, stamp, "L3b")
    k("L3_fin:\n@reset")
    P = lambda n, b: RING0 + 8 * n + 4 * b
    SQ = lambda b: RING0 + 24 + 4 * b
    for b in range(2):
        for n in range(3): k(f"buffer_load_dwordx4 {vr(P(n,b),4)}, v1, s[4:7], s{40+n} offen offset:{b*1024} sc1")
        k(f"buffer_load_dwordx4 {vr(SQ(b),4)}, v1, s[4:7], s43 offen offset:{b*1024} sc1")
    k("s_cmp_eq_u32 s3, s18\ns_cbranch_scc0 L3_nob8")
    c = []
    for n in range(4):
        c += Is(f"s_add_u32 s57, s45, {n*4*9216 + 8192}\nbuffer_load_dwordx4 {vr(BV0+4*n,4)}, v1, s[4:7], s57 offen sc1")
    c += Is(f"s_add_u32 s57, s46, 8192\nbuffer_load_dwordx4 {vr(BV0+16,4)}, v1, s[4:7], s57 offen sc1")
    for x in c:
        if x.kind == "vm_load": x.kind = "cond"
    k(c)
    k("L3_nob8:")
    XR = TM + 28
    for b in range(2):
        for tb in range(2):
            k(fin_unit(ACC2 + 8 * b + 4 * tb, [P(n, b) + 2 * tb for n in range(3)], SQ(b) + 2 * tb, XR + 4 * b + 2 * tb, 48 + tb, 32 * b, ACC1 + 16 * (2 * b + tb)))
    k("s_cmp_eq_u32 s3, s18\ns_cbranch_scc0 L3_done\ns_waitcnt vmcnt(0)")
    for tb in range(2):
        k(fin_unit(None, [BV0 + 4 * n + 2 * tb for n in range(4)], BV0 + 16 + 2 * tb, XR + 8 + 2 * tb, 50 + tb, 0, ACC1 + 16 * tb))
    k("L3_done:")
    if stamps:
        k(stamp())
        k("s_waitcnt vmcnt(0)")
        k(stamp())
        k(f"s_waitcnt lgkmcnt(0)\ns_lshl_b32 s54, s2, 2\ns_add_u32 s54, s54, s3\ns_lshl_b32 s54, s54, 7\ns_add_u32 s54, s54, {STAMP + (2<<20)}")
        for i in range(nst[0]):
            k(f"v_mov_b32 v16, s{64+2*i}\nv_mov_b32 v17, s{65+2*i}\nbuffer_store_dwordx2 v[16:17], off, s[4:7], s54 offset:{8*i}\ns_nop 1")
    k("L3_end:\ns_endpgm")
    k.nstamps = nst[0]
    return k
```

```python
KB = 1024
XN   = 0
W1Q  = XN + 64*36*KB
W1S  = W1Q + 32*9*8*KB
PHIA = W1S + 32*5*8*KB
WOT  = PHIA + 32*6*KB
WD1  = WOT + 4*18*9*KB
WD2  = WD1 + 4*144*7*KB
HX   = WD2 + 4*144*2*KB + 64*KB
KVP  = HX + 128*162*KB + 64*KB
PHQ  = KVP + 32*8*6*KB
FLG2 = PHQ + 256*4*2*5*KB
FLG3 = FLG2 + 32*128
XCH  = FLG2 + 16*KB
SXC  = XCH + 64*4*4*9*KB
WSEND = SXC + 64*4*9*KB + 4*KB
STAMP = 128*1024*1024
WS_BYTES = 268435456
HXROW = 162*KB
KS = [0, 21, 62, 103, 144]
OOB = 0x7ffffff0
assert WSEND < STAMP
import os
STAMPOP = os.environ.get("STAMPOP", "s_memrealtime")
```

```python
from core import *
from collections import deque

class After:
    def __init__(self, idx): self.idx = idx
class Skip:
    def __init__(self, n): self.n = n; self.until = None
class By:
    def __init__(self, idx): self.idx = idx
class Group:
    def __init__(self, ins): self.ins = ins; self.cost = sum(x.cost for x in ins); self.n = len(ins)

def isvm(e):
    if isinstance(e, Group): return any(x.kind in VMK for x in e.ins)
    return isinstance(e, Ins) and e.kind in VMK

def weave(out, main, pre, post, queues, cap, vmgap=0, reserve=None):
    st = {"clk": 0, "lastvm": -10**9}
    def flush_by(i):
        for q in queues:
            last = -1
            for n, e in enumerate(q):
                if isinstance(e, By) and e.idx <= i: last = n
            for _ in range(last + 1):
                e = q.popleft()
                if isinstance(e, Ins): out.append(e)
                elif isinstance(e, Group): out.extend(e.ins)
    for i, m in enumerate(main):
        flush_by(i)
        for x in pre.get(i, []): out.append(x)
        out.append(m)
        st["clk"] += 4 * m.passes
        fn, fc = cap(m)
        if reserve:
            r = reserve(i); fn -= r; fc -= r
        fresh = True
        for x in post.get(i, []):
            out.append(x); fn -= 1; fc -= x.cost
        for q in queues:
            while q and fn > 0 and fc > 0:
                e = q[0]
                if isinstance(e, After):
                    if i >= e.idx: q.popleft(); continue
                    break
                if isinstance(e, Skip):
                    if e.until is None: e.until = i + e.n
                    if i >= e.until: q.popleft(); continue
                    break
                if isinstance(e, By): q.popleft(); continue
                ism = isinstance(e, Ins) and e.kind == "mfma"
                if isvm(e) and st["clk"] - st["lastvm"] < (vmgap(i) if callable(vmgap) else vmgap): break
                if not ism and e.cost > fc and not (fresh and isinstance(e, Group)): break
                q.popleft(); fresh = False
                if isvm(e): st["lastvm"] = st["clk"]
                if isinstance(e, Group): out.extend(e.ins); fc -= e.cost; fn -= e.n
                else:
                    out.append(e)
                    if ism: fn, fc = cap(e); st["clk"] += 4 * e.passes
                    else: fc -= e.cost; fn -= 1
    for q in queues:
        while q:
            e = q.popleft()
            if isinstance(e, Ins): out.append(e)
            elif isinstance(e, Group): out.extend(e.ins)
```

```python
import sys
from core import *
from layout import *
from k1 import build_k1
from k2 import build_k2
from k3 import build_k3
st = len(sys.argv) > 2 and sys.argv[2] == "stamps"
k1, n1 = build_k1()
k2 = build_k2(st)
k3 = build_k3(st)
ks = [k1, k2, k3]; launches = [(k1.name, n1, 256, 0), (k2.name, 256, 256, 163840), (k3.name, 256, 256, 163840)]
hdr = ''.join(l for l in open('recurrent_scan__linear_kernel_hedgehog__swiglu_ffn__prompt.s.ref').readlines()[:12])
emit_file(sys.argv[1], launches, ks, hdr)
print("nops", [k.nops for k in ks], "ninstr", [len(k.final) for k in ks])
print(k2.alloc)
print('nstamps', k2.nstamps, k3.nstamps)
```

```python
import sys
from core import *
from layout import *
from k1 import build_k1
from k2 import build_k2
from k3 import build_k3
hdr = ''.join(l for l in open('recurrent_scan__linear_kernel_hedgehog__swiglu_ffn__prompt.s.ref').readlines()[:12])
def mk(path, npre, npost, grid=256):
    k1, n1 = build_k1(); k2 = build_k2(); k3 = build_k3()
    e = Kernel("empty_kernel", vgpr=8, sgpr=16); e("s_endpgm")
    L = [(e.name, grid, 256, 0)] * npre + [(k1.name, n1, 256, 0), (k2.name, 256, 256, 163840), (k3.name, 256, 256, 163840)] + [(e.name, grid, 256, 0)] * npost
    emit_file(path, L, [k1, k2, k3, e], hdr)
mk("../v0.s", 0, 0); mk("../v1.s", 0, 4); mk("../v2.s", 4, 0); mk("../v3.s", 0, 8, 1)
```

```python
import re

TRANS = ("v_exp_f32", "v_log_f32", "v_rcp_f32", "v_rsq_f32", "v_sqrt_f32", "v_sin_f32", "v_cos_f32")
NODEF = ("buffer_store", "global_store", "ds_write", "s_waitcnt", "s_barrier", "s_nop", "s_branch", "s_cbranch",
         "s_endpgm", "s_sleep", "s_setprio", "buffer_inv", "buffer_wbl2", "s_cmp", "s_bitcmp")
_reg1 = re.compile(r"^-?\|?([vas])(\d+)\|?$")
_regn = re.compile(r"^-?([vas])\[(\d+):(\d+)\]$")

def regs_of(tok):
    tok = tok.strip()
    if tok.startswith("abs(") or tok.startswith("-abs("):
        tok = tok[tok.index("(") + 1:-1]
    m = _reg1.match(tok)
    if m: return [m.group(1) + m.group(2)]
    m = _regn.match(tok)
    if m: return [m.group(1) + str(i) for i in range(int(m.group(2)), int(m.group(3)) + 1)]
    if tok in ("vcc", "exec"): return [tok]
    if tok in ("vcc_lo", "vcc_hi"): return ["vcc"]
    if tok in ("exec_lo", "exec_hi"): return ["exec"]
    if tok == "m0": return ["m0"]
    return []

COSTS = {"st4": 5, "ld": 2, "dsw": 3}
VOP3ONLY = ("v_fma_f32", "v_max3", "v_min3", "v_cvt_pk_bf16", "v_add3", "v_lshl_add", "v_lshl_or", "v_mul_lo", "v_mul_hi", "v_perm_b32", "v_dot2", "v_mfma",
            "v_bfe", "v_and_or", "v_mad", "v_readlane", "v_writelane", "v_pk_", "v_accvgpr", "v_med3")
def _inline(p):
    try:
        v = float(p) if "." in p else int(p, 0)
    except ValueError: return True
    if "." in p: return v in (0.5, 1.0, 2.0, 4.0, -0.5, -1.0, -2.0, -4.0, 0.0)
    return -16 <= v <= 64
def _size(op, parts, kind):
    if kind in ("ds", "vm_load", "vm_store", "dma", "vm_atomic", "vm_misc", "smem", "mfma"): return 8
    if op.startswith(VOP3ONLY) or "_dpp" in op or "_sdwa" in op: return 8
    if op.startswith("s_movk"): return 4
    if any(not _inline(p) for p in parts): return 8
    if kind in ("valu", "trans"):
        if any(p.startswith("-") and not p[1:2].isdigit() for p in parts): return 8
        if len(parts) >= 3 and parts[2][0] != "v": return 8
    return 4

class Ins:
    __slots__ = ("text", "op", "kind", "reads", "writes", "tag", "passes", "srcc", "srcab", "cost", "data", "dpp", "note", "size")
    def __init__(self, text, tag=None):
        self.text = text.strip()
        self.tag = tag
        self.passes = 0; self.srcc = []; self.srcab = []; self.data = []; self.dpp = False; self.note = None; self.size = 4
        t = self.text.split(";")[0].strip()
        if t.endswith(":"):
            self.op = "label"; self.kind = "label"; self.reads = set(); self.writes = set(); self.cost = 0; return
        if t.startswith("@"):
            self.op = t.split()[0]; self.kind = "pseudo"; self.reads = set(); self.writes = set(); self.cost = 1
            self.tag = t.split()[1:] ; return
        sp = t.split(None, 1)
        op = sp[0]; self.op = op
        rest = sp[1] if len(sp) > 1 else ""
        parts = [p.strip() for p in rest.split(",")] if rest else []
        mods = ""
        if parts:
            last = parts[-1].split(None, 1)
            parts[-1] = last[0]
            mods = last[1] if len(last) > 1 else ""
        if op.startswith("s_waitcnt") or op in ("s_nop", "s_sleep", "s_setprio", "s_barrier", "s_endpgm") or op.startswith("s_branch") or op.startswith("s_cbranch"):
            parts = []
        opregs = [regs_of(p) for p in parts]
        modl = mods.split()
        reads = set(); writes = set()
        ndef = 1
        if op.startswith(NODEF): ndef = 0
        is_dma = op.startswith("buffer_load") and "lds" in modl
        is_atomic = op.startswith("buffer_atomic") or op.startswith("global_atomic")
        if is_dma: ndef = 0
        if is_atomic and "sc0" not in modl: ndef = 0
        if op.startswith("v_permlane32_swap") or op.startswith("v_permlane16_swap") or op.startswith("v_swap"): ndef = 2
        if op.startswith(("v_add_co", "v_addc_co", "v_sub_co")): ndef = 2
        for i, r in enumerate(opregs):
            if i < ndef: writes.update(r)
            else: reads.update(r)
        rw = (op.startswith(("v_fmac", "v_permlane", "v_swap", "v_writelane", "s_addk", "s_mulk", "s_cmov")) or "d16" in op or "_dpp" in op or "_sdwa" in op
              or (is_atomic and ndef == 1))
        if rw:
            for i in range(ndef): reads.update(opregs[i])
        if op.startswith("v_mfma"):
            self.kind = "mfma"; self.passes = 8 if "32x32x16" in op else 4
            self.srcab = opregs[1] + opregs[2]; self.srcc = opregs[3]
        elif op.startswith(TRANS): self.kind = "trans"
        elif op.startswith("v_"): self.kind = "valu"
        elif op.startswith("ds_"): self.kind = "ds"
        elif op.startswith(("buffer_", "global_")):
            if op in ("buffer_inv", "buffer_wbl2"): self.kind = "vm_misc"
            elif is_dma: self.kind = "dma"; reads.add("m0")
            elif is_atomic: self.kind = "vm_atomic"
            elif "store" in op:
                self.kind = "vm_store"
                if "x4" in op or "x3" in op:
                    self.data = opregs[0] if op.startswith("buffer_") else opregs[1]
            else: self.kind = "vm_load"
        elif op.startswith(("s_load", "s_buffer_load", "s_memtime", "s_memrealtime")): self.kind = "smem"
        elif op.startswith("s_"): self.kind = "salu"
        else: raise ValueError("unknown op " + t)
        if "_dpp" in op: self.dpp = True
        if op.startswith("s_and_saveexec") or op.startswith("s_or_saveexec"): writes.add("exec"); reads.add("exec")
        if op.startswith("v_cmp") and not writes: writes.add("vcc")
        self.reads = reads; self.writes = writes
        self.cost = 2 if self.kind == "trans" else 1
        if self.kind == "vm_store": self.cost = COSTS["st4"] if "x4" in op else 2
        elif self.kind in ("vm_load", "dma", "vm_atomic"): self.cost = COSTS["ld"]
        elif op.startswith("ds_write_b128"): self.cost = COSTS["dsw"]
        elif op.startswith(("ds_write2_b64", "ds_write_b64")): self.cost = 2
        self.size = _size(op, parts, self.kind)
    def states(self):
        if self.kind in ("label", "pseudo"): return 0
        if self.op == "s_nop": return int(self.text.split()[1], 0) + 1
        return 1
    def __repr__(self): return self.text

def I(text, tag=None): return Ins(text, tag)
def Is(text, tag=None): return [Ins(l, tag) for l in text.split("\n") if l.strip() and not l.strip().startswith(";")]

VMK = ("vm_load", "vm_store", "dma", "vm_atomic", "vm_misc")

def insert_waits(ins):
    out = []
    vm = []
    lg = []
    def need(q, pred):
        idx = -1
        for i, e in enumerate(q):
            if pred(e): idx = i
        return idx
    for x in ins:
        nv = None; nl = None
        if x.kind == "pseudo":
            tags = set(x.tag)
            if x.op == "@waitvm":
                i = need(vm, lambda e: e[1] in tags)
                if i >= 0: nv = len(vm) - 1 - i
            elif x.op == "@waitlgkm":
                i = need(lg, lambda e: e[1] in tags)
                if i >= 0: nl = len(lg) - 1 - i
            elif x.op == "@waitall":
                if vm: nv = 0
                if lg: nl = 0
            elif x.op == "@waitvmall":
                if vm: nv = 0
            elif x.op == "@waitlgkmall":
                if lg: nl = 0
            elif x.op == "@reset":
                vm = []; lg = []; continue
            else: raise ValueError(x.text)
        elif x.op.startswith("s_waitcnt"):
            m = re.search(r"vmcnt\((\d+)\)", x.text)
            if m:
                n = int(m.group(1)); vm = vm[len(vm) - n:] if n < len(vm) and n > 0 else ([] if n == 0 else vm)
            m = re.search(r"lgkmcnt\((\d+)\)", x.text)
            if m:
                n = int(m.group(1)); lg = lg[len(lg) - n:] if n < len(lg) and n > 0 else ([] if n == 0 else lg)
            out.append(x); continue
        elif x.kind != "label":
            touched = x.reads | x.writes
            i = need(vm, lambda e: e[0] & touched)
            if i >= 0: nv = len(vm) - 1 - i
            i = need(lg, lambda e: e[0] & touched)
            if i >= 0: nl = len(lg) - 1 - i
        if nl is not None and any(e[2] for e in lg): nl = 0
        if nv is not None or nl is not None:
            s = []
            if nv is not None:
                if nv <= 62: s.append(f"vmcnt({nv})")
                else: s.append("vmcnt(62)"); nv = 62
                vm = vm[len(vm) - nv:] if nv > 0 else []
            if nl is not None:
                if nl > 14: nl = 14
                s.append(f"lgkmcnt({nl})")
                lg = lg[len(lg) - nl:] if nl > 0 else []
            out.append(Ins("s_waitcnt " + " ".join(s)))
        if x.kind == "pseudo": continue
        out.append(x)
        if x.kind in VMK: vm.append((set(x.writes), x.tag))
        elif x.kind == "ds": lg.append((set(x.writes), x.tag, False))
        elif x.kind == "smem": lg.append((set(x.writes), x.tag, True))
    return out

def isv(r): return r[0] in "va" and r not in ("vcc",)
def iss(r): return (r[0] == "s" and r != "scc") or r == "vcc"

def required(p, c):
    n = 0
    pv = p.kind in ("valu", "trans"); cv = c.kind in ("valu", "trans")
    if pv:
        wv = {r for r in p.writes if isv(r)}; ws = {r for r in p.writes if iss(r)}
        if c.kind == "mfma" and wv & c.reads: n = max(n, 2)
        if p.kind == "trans" and c.kind == "valu" and wv & c.reads: n = max(n, 1)
        if c.op.startswith("v_permlane") and wv & c.reads: n = max(n, 2)
        if c.dpp and wv & c.reads: n = max(n, 2)
        if c.op.startswith(("v_readlane", "v_readfirstlane")) and wv & c.reads: n = max(n, 1)
        if ("_sdwa" in p.op) and cv and wv & (c.reads | c.writes): n = max(n, 1)
        if ws:
            if cv and ws & c.reads: n = max(n, 4 if c.op.startswith(("v_readlane", "v_writelane")) else 2)
            if c.kind in VMK and ws & c.reads: n = max(n, 5)
            if c.kind in ("salu", "smem") and ws & c.reads: n = max(n, 2)
    if p.kind == "mfma":
        D = p.writes
        if c.kind == "mfma":
            if D & set(c.srcab): n = max(n, {4: 8, 8: 12}[p.passes])
            if D & set(c.srcc):
                if not (set(c.srcc) == D and c.passes == p.passes): n = max(n, {4: 6, 8: 10}[p.passes])
            elif D & c.writes and not (c.writes == D and c.passes == p.passes): n = max(n, {4: 6, 8: 10}[p.passes])
        elif D & (c.reads | c.writes): n = max(n, {4: 8, 8: 12}[p.passes])
        if cv and set(p.srcc) & c.writes: n = max(n, {4: 3, 8: 7}[p.passes])
    if p.kind == "salu" and "m0" in p.writes and c.kind == "dma": n = max(n, 1)
    if p.kind == "vm_store" and p.data and set(p.data) & c.writes: n = max(n, 2)
    return n

def insert_nops(ins):
    out = []
    nn = 0
    for x in ins:
        if x.kind == "label":
            out.append(x); continue
        dist = 0; need = 0
        for p in reversed(out):
            if dist >= 13: break
            if p.kind == "label": continue
            r = required(p, x)
            if r - dist > need: need = r - dist
            dist += p.states()
        while need > 0:
            k = min(need, 16)
            out.append(Ins(f"s_nop {k-1}")); need -= k; nn += k
        out.append(x)
    return out, nn

class Kernel:
    def __init__(self, name, vgpr, agpr=0, sgpr=100):
        self.name = name; self.ins = []; self.vgpr = vgpr; self.agpr = agpr; self.sgpr = sgpr
    def __call__(self, s, tag=None):
        if isinstance(s, str): self.ins.extend(Is(s, tag))
        elif isinstance(s, Ins): self.ins.append(s)
        else: self.ins.extend(s)
    def finalize(self):
        w = insert_waits(self.ins)
        f, nn = insert_nops(w)
        self.final = f; self.nops = nn
        return f
    def text(self):
        f = self.finalize()
        body = "\n".join((x.text if x.kind == "label" else "    " + x.text) for x in f)
        return f".globl {self.name}\n.p2align 8\n.type {self.name},@function\n{self.name}:\n{body}\n"
    def desc(self):
        acc = (self.vgpr + 3) // 4 * 4
        nfv = acc + self.agpr if self.agpr else self.vgpr
        return (f".p2align 6\n.amdhsa_kernel {self.name}\n  .amdhsa_next_free_vgpr {nfv}\n  .amdhsa_next_free_sgpr {self.sgpr}\n"
                f"  .amdhsa_accum_offset {acc}\n  .amdhsa_group_segment_fixed_size 0\n  .amdhsa_kernarg_size 88\n"
                f"  .amdhsa_user_sgpr_count 2\n  .amdhsa_user_sgpr_kernarg_segment_ptr 1\n  .amdhsa_system_sgpr_workgroup_id_x 1\n"
                f"  .amdhsa_float_denorm_mode_32 3\n  .amdhsa_float_denorm_mode_16_64 3\n"
                f".end_amdhsa_kernel\n")

def emit_file(path, launches, kernels, header=""):
    s = header
    for (name, grid, block, lds) in launches:
        s += f"; @launch kernel={name} grid=({grid},1,1) block=({block},1,1) lds={lds}\n"
    s += '.amdgcn_target "amdgcn-amd-amdhsa--gfx950"\n.text\n'
    for k in kernels: s += k.text()
    s += ".p2align 8\nL_code_end:\n.fill 64, 4, 0xBF800000\n"
    s += '.section .rodata,"a"\n'
    for k in kernels: s += k.desc()
    open(path, "w").write(s)


def rt_begin(k, reg=96):
    k(f"s_memrealtime s[{reg}:{reg+1}]")
def rt_end(k, srd, base, wave="s3", reg=96, wg="s2"):
    k(f"""s_waitcnt vmcnt(0)
    s_memrealtime s[{reg+2}:{reg+3}]
    s_waitcnt lgkmcnt(0)
    s_lshl_b32 s{reg-1}, {wg}, 2
    s_add_u32 s{reg-1}, s{reg-1}, {wave}
    s_lshl_b32 s{reg-1}, s{reg-1}, 4
    s_add_u32 s{reg-1}, s{reg-1}, {base}
    v_mov_b32 v16, s{reg}
    v_mov_b32 v17, s{reg+1}
    v_mov_b32 v18, s{reg+2}
    v_mov_b32 v19, s{reg+3}
    buffer_store_dwordx4 v[16:19], off, s[{srd}:{srd+3}], s{reg-1}""")
```

```python
from core import *
from layout import *

N_LN = 256; N_Q = 288; N_S = 160; N_P = 48; N_D = 162; N_F = 144 + 8
def srd(k, d, ptr, nbytes):
    k(f"s_mov_b32 s{d}, s{ptr}\ns_mov_b32 s{d+1}, s{ptr+1}\ns_mov_b32 s{d+2}, {nbytes}\ns_mov_b32 s{d+3}, 0x20000")

def wave_sum(k, v, s):
    for sh in (1, 2, 4, 8):
        k(f"v_add_f32_dpp v{v}, v{v}, v{v} row_shr:{sh} row_mask:0xf bank_mask:0xf bound_ctrl:0")
    k(f"v_add_f32_dpp v{v}, v{v}, v{v} row_bcast:15 row_mask:0xa bank_mask:0xf")
    k(f"v_add_f32_dpp v{v}, v{v}, v{v} row_bcast:31 row_mask:0xc bank_mask:0xf")
    k(f"v_readlane_b32 s{s}, v{v}, 63")

def rnd_bf16(k, v):
    k(f"v_cvt_pk_bf16_f32 v{v}, v{v}, v{v}\nv_lshlrev_b32 v{v}, 16, v{v}")

def build_k1(stamps=False):
    k = Kernel("prep_kernel", vgpr=64, sgpr=64)
    if stamps: k('s_mov_b32 s54, s2'); rt_begin(k, 56)
    total = N_LN + N_Q + N_S + N_P + N_D + 1 + N_F
    k(f"""
    s_load_dwordx8 s[4:11], s[0:1], 0
    s_load_dwordx4 s[12:15], s[0:1], 40
    s_load_dwordx2 s[16:17], s[0:1], 56
    s_load_dwordx2 s[18:19], s[0:1], 80
    v_and_b32 v1, 63, v0
    v_lshrrev_b32 v2, 6, v0
    v_readfirstlane_b32 s3, v2
    s_waitcnt lgkmcnt(0)
    """)
    srd(k, 20, 18, WS_BYTES)
    k(f"""
    s_cmp_lt_u32 s2, {N_LN}
    s_cbranch_scc1 L_ln
    s_sub_u32 s2, s2, {N_LN}
    s_cmp_lt_u32 s2, {N_Q}
    s_cbranch_scc1 L_q
    s_sub_u32 s2, s2, {N_Q}
    s_cmp_lt_u32 s2, {N_S}
    s_cbranch_scc1 L_s
    s_sub_u32 s2, s2, {N_S}
    s_cmp_lt_u32 s2, {N_P}
    s_cbranch_scc1 L_p
    s_sub_u32 s2, s2, {N_P}
    s_cmp_lt_u32 s2, {N_F}
    s_cbranch_scc1 L_f
    s_sub_u32 s2, s2, {N_F}
    s_cmp_lt_u32 s2, {N_D}
    s_cbranch_scc1 L_d
    s_sub_u32 s2, s2, {N_D}
    s_cmp_eq_u32 s2, 0
    s_cbranch_scc0 L_end
    """)
    k(f"""
    v_lshlrev_b32 v3, 4, v0
    v_add_u32 v3, {FLG2}, v3
    v_mov_b32 v4, 0
    v_mov_b32 v5, 0
    v_mov_b32 v6, 0
    v_mov_b32 v7, 0
    s_mov_b32 s30, 4096
    s_mov_b32 s31, 8192
    s_mov_b32 s32, 12288
    buffer_store_dwordx4 v[4:7], v3, s[20:23], 0 offen
    buffer_store_dwordx4 v[4:7], v3, s[20:23], s30 offen
    buffer_store_dwordx4 v[4:7], v3, s[20:23], s31 offen
    buffer_store_dwordx4 v[4:7], v3, s[20:23], s32 offen
    L_end:
    s_endpgm
    """)
    k("L_ln:\n@reset")
    srd(k, 24, 4, 2048*1152)
    k(f"""
    s_lshl_b32 s30, s2, 2
    s_add_u32 s30, s30, s3
    s_lshl_b32 s30, s30, 1
    s_mul_i32 s31, s30, 1152
    v_lshlrev_b32 v3, 5, v1
    v_cmp_gt_u32 vcc, 36, v1
    v_mov_b32 v4, {OOB}
    v_cndmask_b32 v3, v4, v3, vcc
    buffer_load_dwordx4 v[8:11], v3, s[24:27], s31 offen
    buffer_load_dwordx4 v[12:15], v3, s[24:27], s31 offen offset:16
    buffer_load_dwordx4 v[40:43], v3, s[24:27], s31 offen offset:1152
    buffer_load_dwordx4 v[44:47], v3, s[24:27], s31 offen offset:1168
    s_lshr_b32 s32, s30, 5
    s_mul_i32 s32, s32, {36*1024}
    s_and_b32 s33, s30, 31
    s_lshl_b32 s33, s33, 4
    s_add_u32 s32, s32, s33
    v_lshlrev_b32 v5, 10, v1
    v_cndmask_b32 v5, v4, v5, vcc
    """)
    rows = []
    for r in range(2):
        kk = Kernel("tmp", 64)
        P = 8 + 32 * r; F = 16 + 32 * r; a_ = 6 if r == 0 else 34; m_ = 7 if r == 0 else 35; t_ = 32 if r == 0 else 36; d_ = 33 if r == 0 else 37
        for i in range(8):
            kk(f"v_lshlrev_b32 v{F+2*i}, 16, v{P+i}\nv_and_b32 v{F+1+2*i}, 0xffff0000, v{P+i}")
        kk(f"v_add_f32 v{a_}, v{F}, v{F+1}")
        for i in range(2, 16): kk(f"v_add_f32 v{a_}, v{a_}, v{F+i}")
        wave_sum(kk, a_, 34 + 2 * r)
        kk(f"v_mov_b32 v{m_}, 0x3ae38e39\nv_mul_f32 v{m_}, s{34+2*r}, v{m_}")
        kk(f"v_sub_f32 v{t_}, v{F}, v{m_}\nv_mul_f32 v{a_}, v{t_}, v{t_}")
        for i in range(1, 16): kk(f"v_sub_f32 v{t_}, v{F+i}, v{m_}\nv_fmac_f32 v{a_}, v{t_}, v{t_}")
        kk(f"v_cndmask_b32 v{a_}, 0, v{a_}, vcc")
        wave_sum(kk, a_, 35 + 2 * r)
        kk(f"v_mov_b32 v{d_}, 0x3ae38e39\nv_mul_f32 v{d_}, s{35+2*r}, v{d_}")
        rnd_bf16(kk, m_); rnd_bf16(kk, d_)
        kk(f"v_add_f32 v{d_}, 0x3727c5ac, v{d_}")
        rnd_bf16(kk, d_)
        kk(f"v_sqrt_f32 v{d_}, v{d_}")
        rnd_bf16(kk, d_)
        kk(f"v_rcp_f32 v{d_}, v{d_}")
        for i in range(16): kk(f"v_sub_f32 v{F+i}, v{F+i}, v{m_}")
        for i in range(8): kk(f"v_cvt_pk_bf16_f32 v{P+i}, v{F+2*i}, v{F+1+2*i}")
        for i in range(8): kk(f"v_lshlrev_b32 v{F+2*i}, 16, v{P+i}\nv_and_b32 v{F+1+2*i}, 0xffff0000, v{P+i}")
        for i in range(16): kk(f"v_mul_f32 v{F+i}, v{F+i}, v{d_}")
        for i in range(8): kk(f"v_cvt_pk_bf16_f32 v{P+i}, v{F+2*i}, v{F+1+2*i}")
        kk(f"buffer_store_dwordx4 v[{P}:{P+3}], v5, s[20:23], s32 offen offset:{16*r}\nbuffer_store_dwordx4 v[{P+4}:{P+7}], v5, s[20:23], s32 offen offset:{512+16*r}")
        rows.append(kk.ins)
    for x, y in zip(*rows): k([x, y])
    k("s_endpgm")
    k("L_q:\n@reset")
    srd(k, 24, 6, 576*3456)
    k(f"""
    s_mul_hi_u32 s30, s2, {(1<<32)//18+1}
    s_mul_i32 s31, s30, 18
    s_sub_u32 s31, s2, s31
    s_and_b32 s32, s31, 1
    s_lshr_b32 s31, s31, 1
    s_lshl_b32 s31, s31, 6
    v_lshrrev_b32 v3, 2, v0
    v_add_u32 v3, s31, v3
    s_movk_i32 s33, 3456
    v_mul_lo_u32 v3, v3, s33
    s_mul_i32 s34, s30, 36
    v_add_u32 v3, s34, v3
    v_bfe_u32 v4, v0, 1, 1
    v_xor_b32 v4, s32, v4
    v_and_b32 v5, 1, v0
    v_lshlrev_b32 v6, 4, v5
    v_add_u32 v6, v3, v6
    v_mov_b32 v7, 1152
    v_mul_u32_u24 v7, v7, v4
    v_add_u32 v7, 1152, v7
    v_mul_u32_u24 v7, s32, v7
    v_add_u32 v6, v6, v7
    v_add_u32 v8, 0, v6
    v_add_u32 v9, 4, v6
    v_add_u32 v10, 8, v6
    v_add_u32 v11, 12, v6
    s_cmp_eq_u32 s32, 1
    s_cbranch_scc1 L_q2
    v_mov_b32 v12, {OOB}
    v_cmp_eq_u32 vcc, 1, v5
    v_add_u32 v13, 32, v3
    v_add_u32 v14, {32+1152}, v3
    v_add_u32 v15, {32+2304}, v3
    v_cndmask_b32 v13, v13, v12, vcc
    v_cndmask_b32 v14, v14, v12, vcc
    v_cndmask_b32 v15, v15, v12, vcc
    v_cmp_eq_u32 vcc, 1, v4
    s_nop 1
    v_cndmask_b32 v8, v8, v13, vcc
    v_cndmask_b32 v9, v9, v14, vcc
    v_cndmask_b32 v10, v10, v15, vcc
    v_cndmask_b32 v11, v11, v12, vcc
    L_q2:
    s_mov_b32 s36, {16*36}
    buffer_load_dword v16, v8, s[24:27], 0 offen
    buffer_load_dword v17, v9, s[24:27], 0 offen
    buffer_load_dword v18, v10, s[24:27], 0 offen
    buffer_load_dword v19, v11, s[24:27], 0 offen
    buffer_load_dword v20, v8, s[24:27], s36 offen
    buffer_load_dword v21, v9, s[24:27], s36 offen
    buffer_load_dword v22, v10, s[24:27], s36 offen
    buffer_load_dword v23, v11, s[24:27], s36 offen
    s_lshl_b32 s35, s2, 12
    s_add_u32 s35, s35, {W1Q}
    s_add_u32 s36, s35, {288*4096}
    v_lshlrev_b32 v3, 4, v0
    buffer_store_dwordx4 v[16:19], v3, s[20:23], s35 offen
    buffer_store_dwordx4 v[20:23], v3, s[20:23], s36 offen
    s_endpgm
    """)
    k("L_s:\n@reset")
    k(f"""
    s_mul_hi_u32 s30, s2, {(1<<32)//10+1}
    s_mul_i32 s31, s30, 10
    s_sub_u32 s31, s2, s31
    s_and_b32 s32, s31, 1
    s_lshr_b32 s31, s31, 1
    s_cmp_eq_u32 s32, 1
    s_cselect_b32 s24, s14, s12
    s_cselect_b32 s25, s15, s13
    s_mov_b32 s26, {576*9216}
    s_mov_b32 s27, 0x20000
    v_bfe_u32 v4, v0, 1, 1
    v_xor_b32 v4, s32, v4
    s_lshl_b32 s31, s31, 1
    v_add_u32 v4, s31, v4
    v_lshlrev_b32 v4, 6, v4
    v_lshrrev_b32 v3, 2, v0
    v_add_u32 v3, v3, v4
    s_movk_i32 s33, 9216
    v_mul_lo_u32 v3, v3, s33
    v_and_b32 v5, 1, v0
    v_lshlrev_b32 v5, 4, v5
    v_add_u32 v3, v3, v5
    s_lshl_b32 s34, s30, 5
    s_add_u32 s34, s34, 8192
    buffer_load_dwordx4 v[16:19], v3, s[24:27], s34 offen
    buffer_load_dwordx4 v[20:23], v3, s[24:27], s34 offen offset:512
    s_lshl_b32 s35, s2, 12
    s_add_u32 s35, s35, {W1S}
    s_add_u32 s36, s35, {160*4096}
    v_lshlrev_b32 v3, 4, v0
    buffer_store_dwordx4 v[16:19], v3, s[20:23], s35 offen
    buffer_store_dwordx4 v[20:23], v3, s[20:23], s36 offen
    s_endpgm
    """)
    k("L_p:\n@reset")
    srd(k, 24, 8, 32*648)
    k(f"""
    s_lshl_b32 s30, s2, 2
    s_add_u32 s30, s30, s3
    s_mul_hi_u32 s31, s30, {(1<<32)//6+1}
    s_mul_i32 s32, s31, 6
    s_sub_u32 s32, s30, s32
    s_cmp_ge_u32 s32, 3
    s_cselect_b32 s33, 1, 0
    s_mul_i32 s34, s33, 3
    s_sub_u32 s34, s32, s34
    v_and_b32 v3, 31, v1
    v_lshrrev_b32 v4, 5, v1
    v_bfe_u32 v5, v3, 2, 1
    v_lshrrev_b32 v6, 3, v3
    v_lshlrev_b32 v6, 2, v6
    v_and_b32 v7, 3, v3
    v_add_u32 v6, v6, v7
    s_lshl_b32 s35, s33, 4
    v_add_u32 v6, s35, v6
    s_mul_i32 s36, s31, 648
    v_lshlrev_b32 v7, 1, v6
    v_add_u32 v7, s36, v7
    v_mov_b32 v12, {OOB}
    v_cmp_gt_u32 vcc, 18, v6
    s_nop 1
    v_cndmask_b32 v7, v12, v7, vcc
    v_mov_b32 v16, 0
    v_mov_b32 v17, 0
    v_mov_b32 v18, 0
    v_mov_b32 v19, 0
    s_cmp_eq_u32 s34, 2
    s_cbranch_scc1 L_p2
    v_cmp_eq_u32 vcc, s34, v5
    s_nop 1
    v_cndmask_b32 v7, v12, v7, vcc
    v_mul_u32_u24 v8, {4*36}, v4
    v_add_u32 v7, v7, v8
    """)
    for i in range(8):
        d = (i & 3) + 8 * (i >> 2)
        k(f"buffer_load_ushort v{24+i}, v7, s[24:27], 0 offen offset:{d*36}")
    for i in range(4): k(f"v_lshl_or_b32 v{16+i}, v{25+2*i}, 16, v{24+2*i}")
    k(f"""
    s_branch L_p3
    L_p2:
    @reset
    v_cmp_eq_u32 vcc, 0, v4
    s_nop 1
    v_cndmask_b32 v7, v12, v7, vcc
    v_cmp_eq_u32 vcc, 0, v5
    s_nop 1
    v_cndmask_b32 v8, v12, v7, vcc
    v_cndmask_b32 v9, v7, v12, vcc
    buffer_load_ushort v24, v8, s[24:27], 0 offen offset:{16*36}
    buffer_load_ushort v25, v8, s[24:27], 0 offen offset:{17*36}
    buffer_load_ushort v26, v9, s[24:27], 0 offen offset:{16*36}
    buffer_load_ushort v27, v9, s[24:27], 0 offen offset:{17*36}
    v_lshl_or_b32 v16, v25, 16, v24
    v_lshl_or_b32 v17, v27, 16, v26
    L_p3:
    s_waitcnt vmcnt(0)
    s_lshl_b32 s35, s30, 10
    s_add_u32 s35, s35, {PHIA}
    v_lshlrev_b32 v3, 4, v1
    buffer_store_dwordx4 v[16:19], v3, s[20:23], s35 offen
    s_endpgm
    """)
    k("L_d:\n@reset")
    k(f"""
    s_lshr_b32 s30, s3, 1
    s_and_b32 s31, s3, 1
    s_lshl_b32 s31, s31, 2
    s_mov_b32 s40, 1
    s_mov_b32 s41, 2
    s_mov_b32 s42, 8
    s_cmp_lt_u32 s2, 18
    s_cbranch_scc1 L_d_o
    """)
    srd(k, 24, 16, 4608*1152)
    k(f"""
    s_sub_u32 s34, s2, 18
    s_lshl_b32 s32, s34, 5
    s_lshl_b32 s30, s30, 4
    s_add_u32 s32, s32, s30
    s_add_u32 s32, s32, s31
    s_mov_b32 s35, 0
    s_cmp_ge_u32 s34, {KS[1]}
    s_cselect_b32 s35, 2, s35
    s_cmp_ge_u32 s34, {KS[2]}
    s_cselect_b32 s35, 4, s35
    s_cmp_ge_u32 s34, {KS[3]}
    s_cselect_b32 s35, 6, s35
    s_mul_i32 s36, s3, 144
    s_add_u32 s36, s36, s34
    s_mul_i32 s37, s36, 7168
    s_add_u32 s37, s37, {WD1}
    s_lshl_b32 s38, s36, 11
    s_add_u32 s38, s38, {WD2}
    """)
    for b_ in range(9):
        k(f"""s_sub_u32 s39, {b_}, s35
        s_lshl_b32 s43, s39, 10
        s_add_u32 s43, s43, s38
        s_cmp_lt_u32 s35, {b_+1}
        s_cselect_b32 s33, {max(b_-2,0)}, {b_}
        s_lshl_b32 s33, s33, 10
        s_add_u32 s33, s33, s37
        s_cmp_lt_u32 s39, 2
        s_cselect_b32 s{44+b_}, s43, s33""")
    k("s_branch L_d_go\nL_d_o:")
    srd(k, 24, 10, 576*1152)
    k(f"""
    s_mul_i32 s37, s3, 18
    s_add_u32 s37, s37, s2
    s_mul_i32 s37, s37, 9216
    s_add_u32 s44, s37, {WOT}
    """)
    for b_ in range(1, 9): k(f"s_add_u32 s{44+b_}, s44, {b_*1024}")
    k(f"""
    s_mul_i32 s32, s2, 36
    s_mul_i32 s30, s30, 18
    s_add_u32 s32, s32, s30
    s_add_u32 s32, s32, s31
    s_cmp_lt_u32 s2, 16
    s_cbranch_scc1 L_d_go
    s_sub_u32 s32, s2, 16
    s_lshl_b32 s32, s32, 4
    s_lshl_b32 s30, s3, 2
    s_add_u32 s32, s32, s30
    s_mul_i32 s32, s32, 18
    s_add_u32 s32, s32, 16
    s_mov_b32 s41, 18
    s_mov_b32 s42, 36
    L_d_go:
    s_mul_i32 s32, s32, 1152
    s_mul_i32 s33, s3, 9216
    s_movk_i32 s39, 1152
    """)
    for n in range(9):
        k(f"""v_add_u32 v3, {64*n}, v1
        v_mul_u32_u24 v4, 911, v3
        v_lshrrev_b32 v4, 16, v4
        v_mul_u32_u24 v5, 72, v4
        v_sub_u32 v3, v3, v5
        v_and_b32 v5, 1, v4
        v_bfe_u32 v6, v4, 1, 1
        v_mul_u32_u24 v6, s41, v6
        v_lshrrev_b32 v4, 2, v4
        v_mul_u32_u24 v4, s42, v4
        v_add3_u32 v4, v4, v5, v6
        v_mul_u32_u24 v4, s39, v4
        v_lshl_add_u32 v3, v3, 4, v4
        s_add_u32 m0, s33, {n*1024}
        buffer_load_dwordx4 v3, s[24:27], s32 offen lds""")
    k(f"""
    v_lshrrev_b32 v3, 4, v1
    v_lshlrev_b32 v3, 3, v3
    v_bfe_u32 v4, v1, 2, 2
    v_add_u32 v3, v3, v4
    v_mul_u32_u24 v3, 1152, v3
    v_and_b32 v4, 3, v1
    v_lshl_add_u32 v3, v4, 3, v3
    s_mul_i32 s33, s3, 288
    v_add_u32 v3, s33, v3
    v_lshlrev_b32 v2, 4, v1
    s_waitcnt vmcnt(0)
    s_barrier
    """)
    for b_ in range(9):
        k(f"ds_read_b64_tr_b16 v[{8+4*b_}:{9+4*b_}], v3 offset:{32*b_}\nds_read_b64_tr_b16 v[{10+4*b_}:{11+4*b_}], v3 offset:{32*b_+4*1152}")
    for b_ in range(9):
        k(f"buffer_store_dwordx4 v[{8+4*b_}:{11+4*b_}], v2, s[20:23], s{44+b_} offen")
    k("s_endpgm")
    k("L_f:\n@reset")
    k(f"""
    s_cmp_ge_u32 s2, 144
    s_cbranch_scc1 L_fc
    s_and_b32 s30, s2, 7
    s_lshr_b32 s31, s2, 3
    s_lshr_b32 s30, s30, 1
    s_lshl_b32 s30, s30, 11
    s_lshl_b32 s31, s31, 5
    s_lshl_b32 s32, s3, 3
    s_add_u32 s31, s31, s32
    s_mul_i32 s31, s31, 9216
    s_add_u32 s30, s30, s31
    v_and_b32 v3, 7, v1
    v_lshlrev_b32 v3, 8, v3
    v_lshrrev_b32 v4, 3, v1
    s_movk_i32 s33, 9216
    v_mul_lo_u32 v4, v4, s33
    v_add_u32 v3, v3, v4
    """)
    srd(k, 24, 12, 576*9216); srd(k, 28 + 8, 14, 576*9216)
    k("buffer_load_dword v8, v3, s[24:27], s30 offen\nbuffer_load_dword v9, v3, s[36:39], s30 offen")
    k("""s_endpgm
    L_fc:
    @reset
    s_getpc_b64 s[30:31]
    L_fc_pc:
    s_add_u32 s30, s30, gemm1_kernel-L_fc_pc
    s_addc_u32 s31, s31, 0
    v_lshlrev_b32 v3, 7, v0
    global_load_dword v8, v3, s[30:31]
    v_add_u32 v3, 0x8000, v3
    v_min_u32 v3, L_code_end-gemm1_kernel, v3
    global_load_dword v9, v3, s[30:31]
    v_add_u32 v3, 0x8000, v3
    v_min_u32 v3, L_code_end-gemm1_kernel, v3
    global_load_dword v10, v3, s[30:31]
    s_endpgm""")
    if stamps:
        new = []
        for x in k.ins:
            if x.op == "s_endpgm": new += Is("s_branch L1_rt")
            else: new.append(x)
        k.ins = new
        k("L1_rt:\n@reset")
        rt_end(k, 20, STAMP + (4 << 20), reg=56, wg="s54")
        k("s_endpgm")
    return k, total
```

```python
from core import *
from layout import *
from weave import *

NPAGE = 20
SCR = 15 * 8192
PHPAGE = 14
LOG2E = 0x3fb8aa3b
RING0 = 48; NRING = 6; DEPTH = 5
E0 = 72
def T(t): return 96 + 16 * t
def vr(a, n): return f"v[{a}:{a+n-1}]"
def xreg(kk, tb):
    n = kk * 2 + tb
    return f"a[{4*n}:{4*n+3}]" if n < 64 else vr(16 + 4 * (n - 64), 4)

def h_unit(src, sbase, off, oq):
    L = []
    m = E0 + 8
    for p in range(2):
        g = [src + 4 * p + i for i in range(4)]; u = [src + 8 + 4 * p + i for i in range(4)]
        for i in range(4): L += Is(f"v_mul_f32 v{m+i}, s55, v{g[i]}")
        for i in range(4): L += Is(f"v_exp_f32 v{m+i}, v{m+i}\nv_mul_f32 v{u[i]}, v{g[i]}, v{u[i]}")
        for i in range(4): L += Is(f"v_add_f32 v{m+i}, 1.0, v{m+i}")
        for i in range(4): L += Is(f"v_rcp_f32 v{m+i}, v{m+i}")
        for i in range(4): L += Is(f"v_mul_f32 v{u[i]}, v{u[i]}, v{m+i}")
        L += Is(f"v_cvt_pk_bf16_f32 v{oq+2*p}, v{u[0]}, v{u[1]}\nv_cvt_pk_bf16_f32 v{oq+2*p+1}, v{u[2]}, v{u[3]}")
    L += Is(f"buffer_store_dwordx4 {vr(oq,4)}, v3, s[4:7], s{sbase} offen offset:{off}")
    return L

def softmax(P, X):
    L = []
    mx, mn, a, b, sp, sn = X, X + 1, X + 2, X + 3, X + 4, X + 5
    L += Is(f"v_max3_f32 v{mx}, v{P[0]}, v{P[1]}, v{P[2]}\nv_min3_f32 v{mn}, v{P[0]}, v{P[1]}, v{P[2]}")
    for i in range(3, 17, 2):
        L += Is(f"v_max3_f32 v{mx}, v{mx}, v{P[i]}, v{P[i+1]}\nv_min3_f32 v{mn}, v{mn}, v{P[i]}, v{P[i+1]}")
    L += Is(f"v_max_f32 v{mx}, v{mx}, v{P[17]}\nv_min_f32 v{mn}, v{mn}, v{P[17]}")
    L += Is(f"v_mul_f32 v{a}, s55, v{mx}\nv_mul_f32 v{b}, s53, v{mn}")
    for i in range(18):
        L += Is(f"v_fma_f32 v{E0+i}, v{P[i]}, s53, v{a}\nv_fma_f32 v{P[i]}, v{P[i]}, s55, v{b}")
        L += Is(f"v_exp_f32 v{E0+i}, v{E0+i}\nv_exp_f32 v{P[i]}, v{P[i]}")
        if i == 1: pass
        if i >= 2:
            if i == 2: L += Is(f"v_add_f32 v{sp}, v{E0}, v{E0+1}\nv_add_f32 v{sn}, v{P[0]}, v{P[1]}")
            else: L += Is(f"v_add_f32 v{sp}, v{sp}, v{E0+i-1}\nv_add_f32 v{sn}, v{sn}, v{P[i-1]}")
    L += Is(f"v_mov_b32 v{E0+18}, 0\nv_add_f32 v{sp}, v{sp}, v{E0+17}\nv_add_f32 v{sn}, v{sn}, v{P[17]}")
    L += Is(f"v_rcp_f32 v{sp}, v{sp}\nv_rcp_f32 v{sn}, v{sn}\nv_mov_b32 v{E0+19}, 0")
    for u in range(9):
        L += Is(f"v_mul_f32 v{E0+2*u}, v{E0+2*u}, v{sp}\nv_mul_f32 v{E0+2*u+1}, v{E0+2*u+1}, v{sp}\nv_cvt_pk_bf16_f32 v{E0+u}, v{E0+2*u}, v{E0+2*u+1}")
    for u in range(9):
        L += Is(f"v_mul_f32 v{P[2*u]}, v{P[2*u]}, v{sn}\nv_mul_f32 v{P[2*u+1]}, v{P[2*u+1]}, v{sn}\nv_cvt_pk_bf16_f32 v{E0+9+u}, v{P[2*u]}, v{P[2*u+1]}")
    return L

def build_k2(stamps=False, stset=(1, 9, 18, 27), midx=(0,), LOOK=5, LOOKSG=9, PRO=1, VG1=40, VG=64, POLL=50, dbg='', BARS=(0,1,2,3,4,5,6,7,8,9,11,13,15,17,20,23,26,29,32)):
    k = Kernel("gemm1_kernel", vgpr=256, agpr=256, sgpr=100)
    nst = [0]
    def stamp():
        if not stamps: return []
        i = nst[0]; nst[0] += 1
        return Is(f"{STAMPOP} s[{64+2*i}:{65+2*i}]")
    if stamps: rt_begin(k)
    k(stamp())
    k(f"""
    s_cmp_ge_u32 s2, 256
    s_cbranch_scc1 L2_end
    s_load_dwordx4 s[8:11], s[0:1], 40
    s_load_dwordx2 s[4:5], s[0:1], 80
    v_lshrrev_b32 v1, 6, v0
    v_and_b32 v0, 63, v0
    v_readfirstlane_b32 s3, v1
    s_and_b32 s54, s2, 7
    s_lshr_b32 s56, s2, 3
    s_and_b32 s12, s54, 1
    s_lshl_b32 s12, s12, 2
    s_and_b32 s57, s56, 3
    s_add_u32 s12, s12, s57
    s_lshr_b32 s13, s54, 1
    s_lshl_b32 s13, s13, 3
    s_lshr_b32 s57, s56, 2
    s_add_u32 s13, s13, s57
    s_lshl_b32 s14, s3, 11
    s_lshr_b32 s58, s3, 1
    s_and_b32 s59, s3, 1
    s_lshl_b32 s15, s58, 12
    s_lshl_b32 s57, s59, 11
    s_add_u32 s15, s15, s57
    s_lshl_b32 s16, s12, 3
    s_lshl_b32 s57, s3, 1
    s_add_u32 s16, s16, s57
    s_mul_i32 s16, s16, {36*1024}
    s_add_u32 s16, s16, {XN}
    s_add_u32 s25, s16, {36*1024}
    """)
    for q in range(1, 9): k(f"s_add_u32 s{16+q}, s16, {4096*q}\ns_add_u32 s{25+q}, s25, {4096*q}")
    k(f"""
    s_mul_i32 s34, s13, {9*8192}
    s_add_u32 s34, s34, s14
    s_add_u32 s34, s34, {W1Q}
    s_mul_i32 s36, s13, {5*8192}
    s_add_u32 s36, s36, s14
    s_add_u32 s36, s36, {W1S}
    s_mul_i32 s37, s59, {32*9216}
    s_lshl_b32 s57, s13, 8
    s_add_u32 s37, s37, s57
    v_lshlrev_b32 v1, 4, v0
    v_lshrrev_b32 v2, 2, v0
    s_movk_i32 s57, 9216
    v_mul_lo_u32 v2, v2, s57
    v_bfe_u32 v3, v0, 1, 1
    v_xor_b32 v3, s58, v3
    v_lshlrev_b32 v3, 5, v3
    v_and_b32 v4, 1, v0
    v_lshlrev_b32 v4, 4, v4
    v_add3_u32 v2, v2, v3, v4
    s_mul_i32 s48, s13, 6144
    s_add_u32 s48, s48, s14
    s_add_u32 s48, s48, {PHIA}
    s_waitcnt lgkmcnt(0)
    s_mov_b32 s6, {WS_BYTES}
    s_mov_b32 s7, 0x20000
    s_cmp_eq_u32 s58, 1
    s_cselect_b32 s8, s10, s8
    s_cselect_b32 s9, s11, s9
    s_mov_b32 s10, {576*9216}
    s_mov_b32 s11, 0x20000
    """)
    def dma_lin(sreg, add, page, tag):
        return Is(f"""s_add_u32 m0, s14, {page*8192}
        s_add_u32 s38, s{sreg}, {add}
        buffer_load_dwordx4 v1, s[4:7], s38 offen lds
        buffer_load_dwordx4 v1, s[4:7], s38 offen offset:1024 lds""", tag)
    def dma_sg(sg, q, pa, pb, tag):
        X = q * 64 * 9216 + sg * 128
        return Is(f"""s_add_u32 m0, s15, {pa*8192}
        s_add_u32 s38, s37, {X}
        buffer_load_dwordx4 v2, s[8:11], s38 offen lds
        s_add_u32 m0, s15, {pb*8192-64 if pb*8192-64 >= 0 else (1<<32)-64}
        s_add_u32 s39, s37, {X + 16*9216 - 1024}
        buffer_load_dwordx4 v2, s[8:11], s38 offen offset:64 lds
        buffer_load_dwordx4 v2, s[8:11], s39 offen offset:1088 lds
        s_add_u32 m0, s15, {pa*8192}
        @nopslot
        buffer_load_dwordx4 v2, s[8:11], s39 offen offset:1024 lds""".replace("@nopslot\n", ""), tag)
    def xloads(q):
        L = []
        for kk in range(4 * q, 4 * q + 4):
            for tb in range(2):
                L += Is(f"buffer_load_dwordx4 {xreg(kk,tb)}, v1, s[4:7], s{(16 if tb == 0 else 25)+q} offen offset:{(kk&3)*1024}")
        return L
    groups = []
    for q in range(9):
        groups.append(("Q", q, q, [q]))
        if q % 2 == 0: groups.append(("S", q // 2, q, [min(q + 1, 8)]))
    for q in range(9): groups.append(("SG0", q, 9 + q, [9 + q, 18 + q]))
    for q in range(9): groups.append(("SG1", q, 27 + q, [27 + q, 99]))
    page_rel = {p: -9 for p in range(NPAGE)}
    page_rel[PHPAGE] = 17
    pageof = {}
    issue_at = {}
    NB = 36
    gi = 0
    pubbar = lambda s_: max(b for b in BARS if b <= s_)
    for t in (-1,) + tuple(BARS):
        L = []
        while gi < len(groups):
            name, q, need, rels = groups[gi]
            need = pubbar(need)
            if need > (t + (LOOK if name[0:2] != 'SG' else LOOKSG) if t >= 0 else PRO): break
            free = [p for p in range(NPAGE) if page_rel[p] <= t - 2]
            got = []
            for r in rels:
                cand = [p for p in free if p not in got and (p < 15 or r <= 7 or (p >= 18 and t >= 26)) and not (p == 0 and name.startswith("SG") and len(got) == 1)]
                if not cand: got = None; break
                cand.sort(key=lambda p: (0 if (p >= 15) else 1, p))
                got.append(cand[0])
            if got is None: break
            for p, r in zip(got, rels): page_rel[p] = r
            tag = f"st{need}"
            if name == "Q":
                pageof[("Q", q)] = got[0]; L += dma_lin(34, q * 8192, got[0], tag)
                if q % 2 == 1: L += xloads(q)
                if q == 5:
                    L += Is(f"s_add_u32 m0, s14, {PHPAGE*8192}\nbuffer_load_dwordx4 v1, s[4:7], s48 offen lds\nbuffer_load_dwordx4 v1, s[4:7], s48 offen offset:1024 lds", "st5")
            elif name == "S":
                pageof[("S", q)] = got[0]; L += dma_lin(36, q * 8192, got[0], tag) + xloads(2 * q)
            else:
                sg = int(name[2]); pageof[("A", sg, q)] = got[0]; pageof[("B", sg, q)] = got[1]
                L += dma_sg(sg, q, got[0], got[1], tag)
            assert need > t, (name, q, need, t)
            L.append(('BY', need))
            gi += 1
        issue_at[t] = L
    assert gi == len(groups)
    k.alloc = (pageof, {t: len([x for x in L if isinstance(x, Ins) and x.kind in VMK]) for t, L in issue_at.items()})
    k([x for x in issue_at[-1] if isinstance(x, Ins)])
    k(f"""
    v_bfe_u32 v4, v0, 4, 1
    s_mov_b32 s57, {HXROW}
    v_mul_lo_u32 v4, v4, s57
    v_and_b32 v13, 15, v0
    v_lshl_add_u32 v4, v13, 4, v4
    v_lshrrev_b32 v14, 5, v0
    v_lshl_add_u32 v3, v14, 8, v4
    v_cmp_eq_u32 vcc, 0, v14
    v_mov_b32 v15, {OOB}
    v_cndmask_b32 v4, v15, v4, vcc
    v_bfe_u32 v15, v0, 4, 1
    v_lshlrev_b32 v5, 12, v15
    v_lshl_add_u32 v5, v14, 9, v5
    v_bfe_u32 v6, v0, 2, 2
    v_lshl_add_u32 v5, v6, 6, v5
    v_and_b32 v6, 3, v0
    v_lshl_add_u32 v5, v6, 3, v5
    v_xor_b32 v6, 1, v15
    v_lshl_add_u32 v6, v6, 5, v5
    v_lshl_add_u32 v5, v15, 5, v5
    v_add_u32 v7, 0x10000, v5
    v_add_u32 v8, 0x10000, v6
    v_add_u32 v9, 0x20000, v5
    v_add_u32 v10, 0x20000, v6
    s_mul_i32 s60, s3, 10240
    s_add_u32 s60, s60, {SCR}
    v_and_b32 v11, 31, v0
    v_mul_u32_u24 v11, 160, v11
    v_add_u32 v11, s60, v11
    v_lshrrev_b32 v12, 2, v0
    v_mul_u32_u24 v12, 160, v12
    v_and_b32 v15, 3, v0
    v_lshl_add_u32 v12, v15, 3, v12
    v_add_u32 v12, s60, v12
    v_and_b32 v15, 31, v0
    v_min_u32 v15, 18, v15
    v_lshrrev_b32 v13, 4, v15
    v_mul_u32_u24 v13, 3072, v13
    v_and_b32 v15, 15, v15
    v_lshl_add_u32 v13, v15, 4, v13
    v_lshl_add_u32 v13, v14, 8, v13
    s_lshl_b32 s40, s12, 4
    s_lshl_b32 s57, s3, 2
    s_add_u32 s40, s40, s57
    s_mul_i32 s40, s40, {HXROW}
    s_add_u32 s40, s40, {HX}
    s_lshr_b32 s57, s13, 1
    s_lshl_b32 s57, s57, 10
    s_and_b32 s56, s13, 1
    s_lshl_b32 s56, s56, 9
    s_add_u32 s57, s57, s56
    s_add_u32 s44, s40, s57
    s_add_u32 s42, s44, {(18+128)*1024}
    s_lshr_b32 s57, s13, 4
    s_lshl_b32 s57, s57, 10
    s_add_u32 s46, s40, s57
    s_and_b32 s57, s13, 15
    s_lshr_b32 s57, s57, 2
    s_lshl_b32 s57, s57, 8
    s_add_u32 s46, s46, s57
    s_and_b32 s57, s13, 3
    s_lshl_b32 s57, s57, 2
    s_add_u32 s46, s46, s57
    s_add_u32 s46, s46, {16*1024}
    s_lshl_b32 s57, s13, 12
    s_add_u32 s40, s40, s57
    s_add_u32 s40, s40, {18*1024}
    s_add_u32 s41, s40, {2*HXROW}
    s_add_u32 s43, s42, {2*HXROW}
    s_add_u32 s45, s44, {2*HXROW}
    s_add_u32 s47, s46, {2*HXROW}
    s_lshl_b32 s49, s2, 2
    s_add_u32 s49, s49, s3
    s_mul_i32 s35, s49, 11520
    s_add_u32 s35, s35, {XCH}
    s_mul_i32 s49, s49, 10240
    s_add_u32 s49, s49, {PHQ}
    s_mul_i32 s51, s13, {8*6144}
    s_add_u32 s51, s51, {KVP}
    s_mul_i32 s50, s12, 6144
    s_add_u32 s50, s50, s51
    s_mul_i32 s57, s3, 12288
    s_add_u32 s51, s51, s57
    s_min_u32 s57, s3, 2
    s_lshl_b32 s57, s57, 10
    s_add_u32 s50, s50, s57
    s_add_u32 s61, s57, {SCR}
    s_lshl_b32 s52, s13, 7
    s_add_u32 s52, s52, {FLG2}
    s_mov_b32 s53, {LOG2E}
    s_mov_b32 s55, {LOG2E | 0x80000000}
    s_mov_b32 s62, 0
    s_mov_b32 s63, -1
    """)
    frags = []
    def add(t, page, kk, seg, tups):
        frags.append((t, page * 8192 + (kk & 3) * 1024, seg, kk, tups))
    for kk in range(36):
        q = kk >> 2
        add(q, pageof[("Q", q)], kk, 0, (0, 2)); add(q, pageof[("Q", q)], kk, 1, (1, 3))
        add(q, pageof[("S", q >> 1)], kk, q & 1, (4, 5))
    n_ph2 = len(frags)
    for kk in range(36):
        q = kk >> 2
        add(9 + q, pageof[("A", 0, q)], kk, 0, (6, 7)); add(9 + q, pageof[("A", 0, q)], kk, 1, (8, 9))
    n_ph3 = len(frags)
    for kk in range(36):
        q = kk >> 2
        add(18 + q, pageof[("B", 0, q)], kk, 0, (0, 2)); add(18 + q, pageof[("B", 0, q)], kk, 1, (4, 5))
    n_ph4 = len(frags)
    for kk in range(36):
        q = kk >> 2
        add(27 + q, pageof[("A", 1, q)], kk, 0, (6, 7)); add(27 + q, pageof[("A", 1, q)], kk, 1, (8, 9))
    n_ph5a = len(frags)
    for kk in range(36): add(36, pageof[("B", 1, kk >> 2)], kk, 0, (0, 2))
    n_ph5b = len(frags)
    for kk in range(36): add(36, pageof[("B", 1, kk >> 2)], kk, 1, (4, 5))
    NF = len(frags)
    def rd(n, h):
        t, base, seg, kk, _ = frags[n]
        a = base + h * 256
        r = RING0 + 4 * (n % NRING) + 2 * h
        return I(f"ds_read_b64_tr_b16 v[{r}:{r+1}], v{5 + 2*(a >> 16) + seg} offset:{a & 0xffff}", f"fr{n}")
    main = []; pre = {}; post = {}
    for n, (t, base, seg, kk, tups) in enumerate(frags):
        r = RING0 + 4 * (n % NRING)
        if n % 2 == 0 and n + 1 < NF: pre[2 * n] = Is(f"@waitlgkm fr{n+1}")
        for tb in range(2):
            d = vr(T(tups[tb]), 16)
            main.append(I(f"v_mfma_f32_32x32x16_bf16 {d}, {vr(r,4)}, {xreg(kk,tb)}, {'0' if kk == 0 else d}"))
    bar_idx = {}
    ioq = deque()
    k(stamp())
    k("@waitvm st0\ns_barrier")
    for n in range(DEPTH): k([rd(n, 0), rd(n, 1)])
    ioq.extend(issue_at[0])
    extra_bar = {}
    cur = 0
    for n in range(NF - DEPTH):
        m = n + DEPTH
        t = frags[m][0]
        p0 = post.setdefault(2 * n, []); p1 = post.setdefault(2 * n + 1, [])
        if t != cur and t in BARS:
            cur = t; bar_idx[t] = 2 * n
            p0.append(("BAR", t))
        p0.append(rd(m, 0)); p1.append(rd(m, 1))
    bg = deque()
    M2, M3, M4, M5a, M5b = 2 * n_ph2, 2 * n_ph3, 2 * n_ph4, 2 * n_ph5a, 2 * n_ph5b
    M4a = M5a
    oq = [0]
    def nq():
        oq[0] ^= 1; return E0 + 4 * oq[0]
    bg.append(After(M2 - 1))
    for tb in range(2):
        a, b = T(2 * tb), T(2 * tb + 1)
        for i in range(8): bg.append(I(f"v_cvt_pk_bf16_f32 v{a+i}, v{a+2*i}, v{a+2*i+1}"))
        for i in range(8): bg.append(I(f"v_cvt_pk_bf16_f32 v{a+8+i}, v{b+2*i}, v{b+2*i+1}"))
    for tb in range(2): bg.extend(h_unit(T(4 + tb), 42 + tb, 0, nq()))
    bg.append(I(f"v_mov_b32 v15, 0x3f80"))
    bg.append(I(f"v_add_u32 v14, {PHPAGE*8192}, v1"))
    for tb in range(2):
        Q = T(2 * tb)
        O = (T(4), T(5)) if tb == 0 else (T(1), T(3))
        for f in range(6): bg.append(I(f"ds_read_b128 {vr(E0+4*f,4)}, v14 offset:{f*1024}"))
        bg.append(I(f"v_lshrrev_b32 v{O[1]}, 5, v0"))
        bg.append(I(f"v_lshl_add_u32 v{O[1]}, v{O[1]}, 3, v11"))
        if tb == 1: bg.append(I(f"v_add_u32 v{O[1]}, 5120, v{O[1]}"))
        bg.append(I(f"ds_write2_b64 v{O[1]}, {vr(Q+12,2)}, {vr(Q+14,2)} offset0:12 offset1:14"))
        bg.append(Group(Is(f"s_mov_b64 exec, s[62:63]\nds_write_b32 v11, v{Q+8} offset:{tb*5120+128}\nds_write_b32 v11, v15 offset:{tb*5120+132}\ns_mov_b64 exec, -1")))
        bg.append(Skip(2))
        for ob in range(2):
            d = vr(O[ob], 16)
            for hb in range(3):
                bg.append(I(f"v_mfma_f32_32x32x16_bf16 {d}, {vr(E0+4*(3*ob+hb),4)}, {vr(Q+4*hb,4)}, {'0' if hb == 0 else d}"))
        if tb == 1: bg.append(By(M3))
        bg.append(Skip(2))
        P = [O[0] + i for i in range(16)] + [O[1], O[1] + 1]
        bg.extend(softmax(P, O[1] + 2))
        for m in range(5):
            n = tb * 5 + m
            if n % 4 == 0: bg.append(I(f"s_add_u32 s54, s49, {n*1024}"))
            bg.append(I(f"buffer_store_dwordx4 {vr(E0+4*m,4)}, v1, s[4:7], s54 offen offset:{(n%4)*1024}", "stash"))
        g = Is("s_mov_b64 exec, s[62:63]")
        for m in range(4): g += Is(f"ds_write_b128 v11, {vr(E0+4*m,4)} offset:{tb*5120+16*m}")
        g += Is(f"ds_write_b64 v11, {vr(E0+16,2)} offset:{tb*5120+64}\ns_mov_b64 exec, -1")
        bg.append(Group(g))
    KA = T(1); KB_ = E0 + 12
    accr = [T(3), T(3) + 4, T(3) + 8, T(3) + 12, T(1) + 12, E0 + 20]
    for r in range(2):
        for seg in (0, 3, 4, 1, 2):
            d = KA + 4 * seg if seg < 3 else KB_ + 4 * (seg - 3)
            for h in range(2):
                bg.append(I(f"ds_read_b64_tr_b16 {vr(d+2*h,2)}, v12 offset:{r*5120 + seg*32 + h*2560}"))
        if r == 0:
            bg.append(After(M3 + 1)); bg.extend(h_unit(T(6), 40, 0, nq())[:26])
        else: bg.extend(h_unit(T(6), 40, 0, E0 + 4 * oq[0])[26:])
        for rb in range(3):
            for cb in range(2):
                d = vr(accr[cb * 3 + rb], 4)
                bg.append(I(f"v_mfma_f32_16x16x32_bf16 {d}, {vr(KA+4*rb,4)}, {vr(KB_+4*cb,4)}, {'0' if r == 0 else d}"))
    bg.append(I(f"v_add_u32 v14, s60, v1"))
    bg.append(Skip(1))
    for sl in range(6): bg.append(I(f"ds_write_b128 v14, {vr(accr[sl],4)} offset:{sl*1024}", "red"))
    bg.extend(h_unit(T(7), 41, 0, nq()))
    bg.append(I(f"v_add_u32 v14, s61, v1"))
    bg.append(Group(Is("@waitlgkm red\ns_barrier")))
    RR = (T(1), T(3))
    for cb in range(2):
        for src in range(4): bg.append(I(f"ds_read_b128 {vr(RR[cb]+4*src,4)}, v14 offset:{src*10240+cb*3072}", "red2"))
    bg.append(Skip(3))
    for cb in range(2):
        b = RR[cb]
        for i in range(4): bg.extend(Is(f"v_add_f32 v{b+i}, v{b+i}, v{b+4+i}\nv_add_f32 v{b+8+i}, v{b+8+i}, v{b+12+i}"))
        for i in range(4): bg.append(I(f"v_add_f32 v{b+i}, v{b+i}, v{b+8+i}"))
        bg.append(I(f"buffer_store_dwordx4 {vr(b,4)}, v1, s[4:7], s50 offen offset:{cb*3072} sc1", "kvp"))
    bg.append(By(bar_idx[26]))
    for tb in range(2): bg.extend(h_unit(T(8 + tb), 40 + tb, 512, nq()))
    bg.append(By(M4))
    bg.append(After(M4 + 1))
    bg.append(I("v_mov_b32 v15, 1"))
    bg.extend(h_unit(T(4), 40, 1024 + 512, nq()))
    bg.append(Group(Is("@waitvm kvp\ns_mov_b64 exec, 1\nbuffer_atomic_add v15, off, s[4:7], s52 sc1\ns_mov_b64 exec, -1")))
    bg.extend(h_unit(T(5), 41, 1024 + 512, nq()))
    bg.extend(h_unit(T(0), 40, 1024, nq()))
    bg.extend(h_unit(T(2), 41, 1024, nq()))
    bg.append(By(M5a))
    bg.extend(Is(f"v_mov_b32 v{E0+12}, -1\nv_mov_b32 v{E0+13}, -1\nv_mov_b32 v{E0+14}, -1\nv_mov_b32 v{E0+15}, -1"))
    for n in range(0 if 'nofill' in dbg else 12):
        if n % 4 == 0: bg.append(I(f"s_add_u32 s54, s35, {n*1024}"))
        bg.append(I(f"buffer_store_dwordx4 {vr(E0+12,4)}, v1, s[4:7], s54 offen offset:{(n%4)*1024}"))
    bg.append(After(M5a - POLL))
    bg.append(I("buffer_load_dword v15, off, s[4:7], s52 sc1"))
    bg.append(After(M5a - POLL + 30))
    bg.append(Group(Is("v_readfirstlane_b32 s54, v15\ns_cmp_ge_u32 s54, 32\ns_cbranch_scc0 L2_spin\nL2_back:")))
    S = [T(1), T(1) + 4, T(1) + 8, T(1) + 12, T(3)]
    BUF = [[T(4), T(4) + 4, T(4) + 8, T(4) + 12, T(3) + 4], [T(5), T(5) + 4, T(5) + 8, T(5) + 12, T(3) + 8], [T(6), T(6) + 4, T(6) + 8, T(6) + 12, T(3) + 12]]
    for p, dst in enumerate((S, BUF[0])):
        if p: bg.append(I(f"s_add_u32 s51, s51, 6144"))
        for m in range(5): bg.append(I(f"buffer_load_dwordx4 {vr(dst[m],4)}, v13, s[4:7], s51 offen offset:{(m>>1)*1024+(m&1)*512} sc1"))
    bg.append(I("s_mul_i32 s54, s3, 5120"))
    bg.append(I(f"s_add_u32 s54, s54, {SCR}"))
    bg.append(I(f"v_add_u32 v14, s54, v1"))
    bg.append(After(M5a + 1))
    bg.extend(h_unit(T(6), 40, 2048, nq()))
    bg.extend(h_unit(T(7), 41, 2048, nq()))
    bg.extend(h_unit(T(8), 40, 2048 + 512, nq()))
    PH = [[T(7), T(7) + 4, T(7) + 8, T(7) + 12, E0 + 12], [T(8), T(8) + 4, T(8) + 8, T(8) + 12, E0 + 16]]
    bg.append(I("@waitvm stash"))
    for tb in range(2):
        for m in range(5):
            n = tb * 5 + m
            if n % 4 == 0: bg.append(I(f"s_add_u32 s54, s49, {n*1024}"))
            bg.append(I(f"buffer_load_dwordx4 {vr(PH[tb][m],4)}, v1, s[4:7], s54 offen offset:{(n%4)*1024}"))
    for m in range(5):
        for i in range(4): bg.append(I(f"v_add_f32 v{S[m]+i}, v{S[m]+i}, v{BUF[0][m]+i}"))
        bg.append(I(f"ds_write_b128 v14, {vr(S[m],4)} offset:{m*1024}", "g2"))
    bg.append(I(f"v_add_u32 v14, {SCR}, v1"))
    bg.append(Skip(2))
    bg.append(Group(Is("@waitlgkm g2\ns_barrier")))
    for w, dst in enumerate((S, BUF[0], BUF[1], BUF[2])):
        for m in range(5): bg.append(I(f"ds_read_b128 {vr(dst[m],4)}, v14 offset:{w*5120+m*1024}"))
    bg.append(Skip(2))
    for m in range(5):
        for i in range(4): bg.extend(Is(f"v_add_f32 v{S[m]+i}, v{S[m]+i}, v{BUF[0][m]+i}\nv_add_f32 v{BUF[1][m]+i}, v{BUF[1][m]+i}, v{BUF[2][m]+i}"))
        for i in range(4): bg.append(I(f"v_add_f32 v{S[m]+i}, v{S[m]+i}, v{BUF[1][m]+i}"))
    bg.append(By(M5b))
    for m in range(5):
        s_ = S[m]
        bg.extend(Is(f"v_cvt_pk_bf16_f32 v{s_}, v{s_}, v{s_+1}\nv_cvt_pk_bf16_f32 v{s_+1}, v{s_+2}, v{s_+3}\nv_mov_b32 v{s_+2}, 0\nv_mov_b32 v{s_+3}, 0"))
    for m in range(5):
        s_ = S[m]
        bg.extend(Is(f"v_permlane32_swap_b32 v{s_}, v{s_+2}\nv_permlane32_swap_b32 v{s_+1}, v{s_+3}"))
    bg.extend(Is(f"v_mov_b32 v{S[4]+2}, 0\nv_mov_b32 v{S[4]+3}, 0"))
    bg.extend(h_unit(T(9), 41, 2048 + 512, nq()))
    OC = [T(6), T(9)]
    for tb in range(2):
        d = vr(OC[tb], 16)
        for m in range(5):
            bg.append(I(f"v_mfma_f32_32x32x16_bf16 {d}, {vr(S[m],4)}, {vr(PH[tb][m],4)}, {'0' if m == 0 else d}"))
    bg.append(After(M5b + 1))
    bg.extend(h_unit(T(0), 40, 3072, nq()))
    for tb in range(2):
        c = OC[tb]
        bg.extend(Is(f"v_add_f32 v{c+10}, 0x358637bd, v{c+10}\nv_rcp_f32 v{c+10}, v{c+10}\nv_nop"))
        for i in range(10): bg.append(I(f"v_mul_f32 v{c+i}, v{c+i}, v{c+10}"))
        for i in range(5): bg.append(I(f"v_cvt_pk_bf16_f32 v{c+12+i if i < 4 else c+11}, v{c+2*i}, v{c+2*i+1}"))
        bg.append(I(f"buffer_store_dwordx4 {vr(c+12,4)}, v3, s[4:7], s{44+tb} offen"))
        bg.append(I(f"buffer_store_dword v{c+11}, v4, s[4:7], s{46+tb} offen"))
    bg.extend(h_unit(T(2), 41, 3072, nq()))
    for idx in sorted(post):
        L = []
        for x in post[idx]:
            if isinstance(x, tuple):
                t = x[1]
                L += Is("\n".join(extra_bar.get(t, []) + [f"@waitvm st{t}", "s_barrier"]))
                if stamps and t in stset: L += stamp()
                if issue_at[t]: ioq.append(After(idx)); ioq.extend(issue_at[t])
            else: L.append(x)
        post[idx] = L
    if stamps:
        for d in midx: post.setdefault(M4a + d, []).extend(stamp())
    ioq = deque(By(bar_idx[x[1]]) if isinstance(x, tuple) else x for x in ioq)
    if 'nobg' in dbg: bg = deque(Is("L2_back:"))
    if 'novalu' in dbg: bg = deque(x for x in bg if not (isinstance(x, Ins) and x.kind in ("valu", "trans")))
    if 'notrans' in dbg: bg = deque((I("v_mov_b32 v84, v85") if (isinstance(x, Ins) and x.kind == "trans") else x) for x in bg)
    if 'nost' in dbg: bg = deque(x for x in bg if not (isinstance(x, Ins) and x.kind in ("vm_store",)))
    if 'nobar' in dbg:
        for idx in post:
            if idx > M2: post[idx] = [x for x in post[idx] if x.op != "s_barrier"]
    out = []
    weave(out, main, pre, post, [ioq, bg], lambda m: (6, 6, 40) if m.passes == 8 else (2, 2, 16), vmgap=lambda i: VG1 if i < M2 else VG, reserve=lambda i: 1 if i % 4 == 3 else 0)
    k(out)
    k(stamp())
    for tb in range(2): k(h_unit(T(4 + tb), 40 + tb, 3072 + 512, nq()))
    if stamps:
        k(stamp())
        k("@waitvmall")
        k(stamp())
        k(f"s_waitcnt lgkmcnt(0)\ns_lshl_b32 s54, s2, 2\ns_add_u32 s54, s54, s3\ns_lshl_b32 s54, s54, 7\ns_add_u32 s54, s54, {STAMP + (1<<20)}")
        for i in range(nst[0]):
            k(f"v_mov_b32 v16, s{64+2*i}\nv_mov_b32 v17, s{65+2*i}\nbuffer_store_dwordx2 v[16:17], off, s[4:7], s54 offset:{8*i}\ns_nop 1")
        rt_end(k, 4, STAMP + (5 << 20))
    k("""
    L2_end:
    s_endpgm
    L2_spin:
    @reset
    s_mov_b32 s56, 200000
    L2_spin2:
    s_sleep 2
    buffer_load_dword v15, off, s[4:7], s52 sc1
    s_waitcnt vmcnt(0)
    v_readfirstlane_b32 s54, v15
    s_cmp_ge_u32 s54, 32
    s_cbranch_scc1 L2_back
    s_sub_u32 s56, s56, 1
    s_cmp_eq_u32 s56, 0
    s_cbranch_scc0 L2_spin2
    s_branch L2_back
    """)
    k.nstamps = nst[0]
    return k
```

```python
from core import *
from layout import *
from weave import *

LDS3 = 160 * 1024
RING0 = 8; NRING = 8; DEPTH = 6
BV0 = 40
ACC1 = 112
ACC2 = 184
TM = 200
LOG2E = 0x3fb8aa3b
def vr(a, n): return f"v[{a}:{a+n-1}]"
def breg(step, tb):
    n = step * 2 + tb
    return f"a[{4*n}:{4*n+3}]" if n < 64 else vr(BV0 + 4 * (n - 64), 4)

import os
DBG3 = os.environ.get('DBG3', '')
def program(k, first, stamp, lab, LOOK=8, PRO=1, VG=56, EARLY=0, VG2=200):
    if 'late' in DBG3: EARLY = 0
    nh = 21 if first else 41
    b0 = 18 if first else 0
    stages = []
    if first:
        for s0 in range(0, 18, 4): stages.append((0, 23, s0 * 9 * 1024, min(4, 18 - s0), 9, s0))
    for s0 in range(0, nh, 4): stages.append((1, 24, s0 * 7 * 1024, min(4, nh - s0), 7, s0))
    for s0 in range(0, nh, 8): stages.append((2, 25, s0 * 2 * 1024, min(8, nh - s0), 2, s0))
    NS = len(stages)
    addr = {}; live = []
    issue_at = {}
    head = [0]
    def try_alloc(sz, t):
        alive = [(a, b) for (a, b, s) in live if s > t - 2]
        for cand in (head[0], 0):
            if cand + sz <= LDS3 and all(cand + sz <= a or cand >= b for a, b in alive):
                return cand
        return None
    def dma(si):
        ph, sreg, off, ns, nb, s0 = stages[si]
        sz = ns * nb * 1024; bw = sz // 4; n = -(-bw // 1024)
        wreg = {7168: 26, 9216: 27, 4096: 28}.get(bw)
        L = []
        if wreg is None:
            L += Is(f"s_mul_i32 s29, s3, {bw}"); wreg = 29
        for i in range(n):
            if i % 4 == 0:
                L += Is(f"s_add_u32 m0, s{wreg}, {addr[si] + i*1024}\ns_add_u32 s38, s{wreg}, {off + i*1024}\ns_add_u32 s38, s38, s{sreg}")
            L += Is(f"buffer_load_dwordx4 v1, s[4:7], s38 offen offset:{(i%4)*1024} lds", f"st{si}")
        if ph < 2:
            bs = s0 + (b0 if ph == 1 else 0)
            B = Is(f"s_add_u32 s39, s20, {bs*1024}\ns_add_u32 s37, s21, {bs*1024}")
            for st in range(ns):
                for tb in range(2):
                    B += Is(f"buffer_load_dwordx4 {breg(bs+st,tb)}, v1, s[4:7], s{39 if tb == 0 else 37} offen offset:{st*1024}")
            L += B
        return L
    si = 0
    for t in range(-1, NS):
        L = []
        while si < NS and (si <= t + LOOK if t >= 0 else si <= PRO):
            ph, sreg, off, ns, nb, s0 = stages[si]
            sz = ns * nb * 1024 + (1024 if (ns * nb * 256) % 1024 else 0)
            a = try_alloc(sz, t)
            if a is None: break
            addr[si] = a; live.append((a, a + sz, si)); head[0] = a + sz
            L += dma(si) + [('BY', si)]; si += 1
        assert si > t + 1 or si == NS, (t, si)
        issue_at[t] = L
    k([x for x in issue_at[-1] if isinstance(x, Ins)])
    k([I(x.text) for x in k.tlb])
    frags = []
    for si, (ph, sreg, off, ns, nb, s0) in enumerate(stages):
        for st in range(ns):
            for p in range(nb):
                acc = (ACC2 if ph == 2 else ACC1) + 8 * p
                frags.append((si, addr[si] + (st * nb + p) * 1024, acc, s0 + st + (b0 if ph > 0 else 0), s0 + st == 0))
    NF = len(frags)
    def rd(n):
        a = frags[n][1]; r = RING0 + 4 * (n % NRING)
        return I(f"ds_read_b128 {vr(r,4)}, v{2 + (a >> 16)} offset:{a & 0xffff}")
    main = []; post = {}
    for n, (si, a, acc, bstep, zero) in enumerate(frags):
        r = RING0 + 4 * (n % NRING)
        for tb in range(2):
            d = vr(acc + 4 * tb, 4)
            main.append(I(f"v_mfma_f32_16x16x32_bf16 {d}, {vr(r,4)}, {breg(bstep,tb)}, {'0' if zero else d}"))
    k(stamp())
    k("@waitvm st0\ns_barrier")
    for n in range(DEPTH): k(rd(n))
    ioq = deque(issue_at[0])
    cur = 0; bar_idx = {}
    for n in range(NF - DEPTH):
        m = n + DEPTH; t = frags[m][0]
        p0 = post.setdefault(2 * n, [])
        if t != cur:
            cur = t; bar_idx[t] = 2 * n
            p0 += Is(f"@waitvm st{t}\ns_barrier")
            if issue_at[t]: ioq.append(After(2 * n)); ioq.extend(issue_at[t])
        p0.append(rd(m))
    ioq = deque(By(bar_idx[x[1]]) if isinstance(x, tuple) else x for x in ioq)
    M1 = 2 * next(n for n, f in enumerate(frags) if stages[f[0]][0] == 1)
    M2 = 2 * next(n for n, f in enumerate(frags) if stages[f[0]][0] == 2)
    bg = deque()
    def send(acc, q, soff, off):
        L = []
        for i in range(4): L += Is(f"v_cvt_pk_bf16_f32 v{q+i}, v{acc+2*i}, v{acc+2*i+1}")
        L += Is(f"buffer_store_dwordx4 {vr(q,4)}, v1, s[4:7], s{soff} offen offset:{off}{'' if 'plain' in DBG3 else ' sc1'}", "send")
        return L
    if first:
        bg.append(After(M1 - 1))
        for b in range(9):
            for i in range(4): bg.append(I(f"v_cvt_pk_bf16_f32 v{TM+4*b+i}, v{ACC1+8*b+2*i}, v{ACC1+8*b+2*i+1}"))
            if b < 7: bg.append(By(M1 + 2 * b))
        for b in range(9):
            if b % 4 == 0: bg.append(I(f"s_add_u32 s36, s46, {b*1024}"))
            bg.append(I(f"buffer_store_dwordx4 {vr(TM+4*b,4)}, v1, s[4:7], s36 offen offset:{(b%4)*1024} sc1", "send"))
        bg.append(By(M1 + 120))
    if stamp.on: post.setdefault(M2, []).extend(stamp())
    bg0 = bg; bg = ioq
    XR = TM + 40
    for b in range(0 if 'nox' in DBG3 else 3):
        for tb in range(2):
            bg.append(I(f"buffer_load_dwordx2 {vr(XR+4*b+2*tb,2)}, v5, s[8:11], s{(48 if b < 2 else 50)+tb} offen offset:{32*b if b < 2 else 0}"))
    bg.append(After(M2 + 1))
    for p in range(0 if 'nosend' in DBG3 else 7): bg.extend(send(ACC1 + 8 * p, TM + 4 * p, 30 + p if p < 6 else 47, 0))
    bg.append(After(len(main) - EARLY))
    bg.extend(recv_loads())
    out = []
    weave(out, main, {}, post, [ioq, bg0], lambda m: (2, 2, 16), vmgap=lambda i: VG if i < M2 + 10 else VG2, reserve=lambda i: 1 if i % 2 == 1 else 0)
    k(out)
    k(stamp())
    k("s_waitcnt vmcnt(0)")
    k(f"s_branch L3_fin")

PQ = lambda n, b: ACC1 + 8 * n + 4 * b
SQ = lambda b: ACC1 + 24 + 4 * b
B8 = ACC1 + 32
def recv_loads():
    L = []
    for b in range(2):
        for n in range(3): L += Is(f"buffer_load_dwordx4 {vr(PQ(n,b),4)}, v1, s[4:7], s{40+n} offen offset:{b*1024} sc1")
        L += Is(f"buffer_load_dwordx4 {vr(SQ(b),4)}, v1, s[4:7], s43 offen offset:{b*1024} sc1")
    for n in range(4):
        L += Is(f"s_add_u32 s57, s45, {n*4*9216 + 8192}\nbuffer_load_dwordx4 {vr(B8+4*n,4)}, v7, s[4:7], s57 offen sc1")
    L += Is(f"s_add_u32 s57, s46, 8192\nbuffer_load_dwordx4 {vr(B8+16,4)}, v7, s[4:7], s57 offen sc1")
    return L

def fin_unit(acc, parts, sreg, xreg, soff, off, t):
    L = []
    for i in range(4):
        sel = "s58" if i % 2 == 0 else "s59"
        for n, p in enumerate(parts):
            d = acc + i if acc is not None else t + 8 + i
            c = f"v{d}" if (acc is not None or n > 0) else "0"
            L += Is(f"v_dot2_f32_bf16 v{d}, v{p + i//2}, {sel}, {c}")
    f = acc if acc is not None else t + 8
    for i in range(4): L += Is(f"v_mul_f32 v{t+i}, s55, v{f+i}")
    for i in range(4): L += Is(f"v_exp_f32 v{t+i}, v{t+i}")
    for i in range(4):
        L += Is(f"v_lshlrev_b32 v{t+4+i}, 16, v{sreg+i//2}" if i % 2 == 0 else f"v_and_b32 v{t+4+i}, 0xffff0000, v{sreg+i//2}")
    for i in range(4): L += Is(f"v_add_f32 v{t+i}, 1.0, v{t+i}")
    for i in range(4): L += Is(f"v_rcp_f32 v{t+i}, v{t+i}")
    for i in range(4): L += Is(f"v_mul_f32 v{f+i}, v{f+i}, v{t+4+i}")
    for i in range(4):
        L += Is(f"v_lshlrev_b32 v{t+4+i}, 16, v{xreg+i//2}" if i % 2 == 0 else f"v_and_b32 v{t+4+i}, 0xffff0000, v{xreg+i//2}")
    for i in range(4): L += Is(f"v_fma_f32 v{f+i}, v{f+i}, v{t+i}, v{t+4+i}")
    L += Is(f"v_cvt_pk_bf16_f32 v{t+12}, v{f}, v{f+1}\nv_cvt_pk_bf16_f32 v{t+13}, v{f+2}, v{f+3}")
    L += Is(f"buffer_store_dwordx2 {vr(t+12,2)}, v5, s[12:15], s{soff} offen offset:{off}")
    return L

def build_k3(stamps=False):
    k = Kernel("gemm2_kernel", vgpr=256, agpr=256, sgpr=100)
    nst = [0]
    def stamp():
        if not stamps: return []
        i = nst[0]; nst[0] += 1
        return Is(f"{STAMPOP} s[{64+2*i}:{65+2*i}]")
    stamp.on = stamps
    if stamps: rt_begin(k)
    k(stamp())
    k(f"""
    s_cmp_ge_u32 s2, 256
    s_cbranch_scc1 L3_end
    s_load_dwordx2 s[8:9], s[0:1], 0
    s_load_dwordx2 s[12:13], s[0:1], 64
    s_load_dwordx2 s[4:5], s[0:1], 80
    v_lshrrev_b32 v1, 6, v0
    v_and_b32 v0, 63, v0
    v_readfirstlane_b32 s3, v1
    s_and_b32 s54, s2, 7
    s_lshr_b32 s56, s2, 3
    s_lshr_b32 s18, s54, 1
    s_and_b32 s16, s54, 1
    s_lshl_b32 s16, s16, 3
    s_and_b32 s57, s56, 7
    s_add_u32 s16, s16, s57
    s_lshr_b32 s17, s56, 3
    s_mov_b32 s19, {KS[0]}
    s_cmp_eq_u32 s18, 1
    s_cselect_b32 s19, {KS[1]}, s19
    s_cmp_eq_u32 s18, 2
    s_cselect_b32 s19, {KS[2]}, s19
    s_cmp_eq_u32 s18, 3
    s_cselect_b32 s19, {KS[3]}, s19
    s_lshl_b32 s20, s16, 3
    s_lshl_b32 s57, s3, 1
    s_add_u32 s22, s20, s57
    s_mul_i32 s20, s22, {HXROW}
    s_add_u32 s20, s20, {HX}
    s_add_u32 s57, s19, 18
    s_cmp_eq_u32 s18, 0
    s_cselect_b32 s57, 0, s57
    s_lshl_b32 s57, s57, 10
    s_add_u32 s20, s20, s57
    s_add_u32 s21, s20, {HXROW}
    s_mul_i32 s23, s17, {18*9*1024}
    s_add_u32 s23, s23, {WOT}
    s_mul_i32 s57, s17, 144
    s_add_u32 s57, s57, s19
    s_mul_i32 s24, s57, 7168
    s_add_u32 s24, s24, {WD1}
    s_lshl_b32 s25, s57, 11
    s_add_u32 s25, s25, {WD2}
    s_mul_i32 s26, s3, 7168
    s_mul_i32 s27, s3, 9216
    s_lshl_b32 s28, s3, 12
    v_lshlrev_b32 v1, 4, v0
    v_mov_b32 v2, v1
    v_add_u32 v3, 0x10000, v1
    v_add_u32 v4, 0x20000, v1
    s_lshl_b32 s53, s16, 2
    s_add_u32 s53, s53, s17
    s_lshl_b32 s52, s53, 7
    s_add_u32 s52, s52, {FLG3}
    s_mul_i32 s45, s53, {16*9216}
    s_add_u32 s45, s45, s27
    s_add_u32 s45, s45, {XCH}
    s_mul_i32 s46, s53, {4*9216}
    s_add_u32 s46, s46, s27
    s_add_u32 s46, s46, {SXC}
    s_mul_i32 s57, s18, {4*9216}
    s_add_u32 s44, s45, s57
    s_lshl_b32 s60, s18, 1
    """)
    for p in range(6):
        k(f"s_cmp_gt_u32 s60, {p}\ns_cselect_b32 s57, {p}, {p+2}\ns_lshl_b32 s57, s57, 10\ns_add_u32 s{30+p}, s44, s57")
    k(f"s_add_u32 s47, s44, 8192\ns_lshl_b32 s61, s60, 10")
    for n in range(3):
        k(f"s_add_u32 s57, s18, {n+1}\ns_and_b32 s57, s57, 3\ns_mul_i32 s57, s57, {4*9216}\ns_add_u32 s57, s57, s45\ns_add_u32 s{40+n}, s57, s61")
    k(f"""
    s_add_u32 s43, s46, s61
    v_and_b32 v5, 15, v0
    v_mul_u32_u24 v5, 1152, v5
    v_lshrrev_b32 v6, 4, v0
    v_lshl_add_u32 v5, v6, 3, v5
    s_mul_i32 s48, s22, {16*1152}
    s_mul_i32 s57, s17, 288
    s_add_u32 s48, s48, s57
    s_add_u32 s50, s48, 256
    s_lshl_b32 s57, s18, 6
    s_add_u32 s48, s48, s57
    s_add_u32 s49, s48, {16*1152}
    s_add_u32 s51, s50, {16*1152}
    s_cmp_eq_u32 s3, s18
    s_cselect_b32 s57, 0, {OOB}
    v_add_u32 v7, s57, v1
    s_mov_b32 s55, {LOG2E | 0x80000000}
    s_mov_b32 s58, 0x00003f80
    s_mov_b32 s59, 0x3f800000
    s_waitcnt lgkmcnt(0)
    s_mov_b32 s6, {WS_BYTES}
    s_mov_b32 s7, 0x20000
    s_mov_b32 s10, {2048*1152}
    s_mov_b32 s11, 0x20000
    s_mov_b32 s14, {2048*1152}
    s_mov_b32 s15, 0x20000
    """)
    if 'tlb' in DBG3:
        c = Is(f"""buffer_load_dword v{TM+40}, off, s[4:7], s44
        buffer_load_dword v{TM+41}, off, s[4:7], s40
        buffer_load_dword v{TM+42}, off, s[4:7], s41
        buffer_load_dword v{TM+43}, off, s[4:7], s42
        buffer_load_dword v{TM+44}, off, s[4:7], s46
        buffer_load_dword v{TM+45}, v5, s[8:11], s48 offen
        buffer_load_dword v{TM+46}, v5, s[8:11], s49 offen
        buffer_load_dword v{TM+47}, v5, s[12:15], s48 offen
        buffer_load_dword v{TM+48}, v5, s[12:15], s49 offen
        buffer_load_dword v{TM+49}, off, s[4:7], s25""")
        k.tlb = c
    else: k.tlb = []
    k("""
    s_cmp_eq_u32 s18, 0
    s_cbranch_scc1 L3_first
    """)
    base = nst[0]
    program(k, False, stamp, "L3a")
    k("L3_first:\n@reset")
    nst[0] = base
    program(k, True, stamp, "L3b")
    k("L3_fin:\n@reset")
    k(f"s_mov_b32 s56, {1 if DBG3 else 100000}\nL3_chk:")
    k(f"v_max3_u32 v6, v{ACC1}, v{ACC1+1}, v{ACC1+2}\nv_max3_u32 v8, v{ACC1+3}, v{ACC1+4}, v{ACC1+5}")
    for i in range(6, 50, 4): k(f"v_max3_u32 v6, v6, v{ACC1+i}, v{ACC1+i+1}\nv_max3_u32 v8, v8, v{ACC1+i+2}, v{ACC1+i+3}")
    k(f"v_max3_u32 v6, v6, v{ACC1+50}, v{ACC1+51}\nv_max_u32 v6, v6, v8\nv_cmp_eq_u32 vcc, -1, v6\ns_nop 4\ns_cbranch_vccz L3_ok")
    k("s_sub_u32 s56, s56, 1\ns_cmp_eq_u32 s56, 0\ns_cbranch_scc1 L3_ok")
    k(recv_loads())
    k("s_waitcnt vmcnt(0)\ns_branch L3_chk\nL3_ok:")
    k(stamp())
    XR = TM + 40
    for b in range(2):
        for tb in range(2):
            k(fin_unit(ACC2 + 8 * b + 4 * tb, [PQ(n, b) + 2 * tb for n in range(3)], SQ(b) + 2 * tb, XR + 4 * b + 2 * tb, 48 + tb, 32 * b, BV0 + 16 * (2 * b + tb)))
    k("s_cmp_eq_u32 s3, s18\ns_cbranch_scc0 L3_done")
    for tb in range(2):
        k(fin_unit(None, [B8 + 4 * n + 2 * tb for n in range(4)], B8 + 16 + 2 * tb, XR + 8 + 2 * tb, 50 + tb, 0, RING0 + 16 * tb))
    k("L3_done:")
    if stamps:
        k(stamp())
        k("s_waitcnt vmcnt(0)")
        k(stamp())
        k(f"s_waitcnt lgkmcnt(0)\ns_lshl_b32 s54, s2, 2\ns_add_u32 s54, s54, s3\ns_lshl_b32 s54, s54, 7\ns_add_u32 s54, s54, {STAMP + (2<<20)}")
        for i in range(nst[0]):
            k(f"v_mov_b32 v16, s{64+2*i}\nv_mov_b32 v17, s{65+2*i}\nbuffer_store_dwordx2 v[16:17], off, s[4:7], s54 offset:{8*i}\ns_nop 1")
        rt_end(k, 4, STAMP + (6 << 20))
    k("L3_end:\ns_endpgm")
    k.nstamps = nst[0]
    return k
```

```python
from core import *
from collections import deque

class After:
    def __init__(self, idx): self.idx = idx
class Skip:
    def __init__(self, n): self.n = n; self.until = None
class By:
    def __init__(self, idx): self.idx = idx
class Group:
    def __init__(self, ins): self.ins = ins; self.cost = sum(x.cost for x in ins); self.n = len(ins); self.size = sum(x.size for x in ins)

def isvm(e):
    if isinstance(e, Group): return any(x.kind in VMK for x in e.ins)
    return isinstance(e, Ins) and e.kind in VMK

def weave(out, main, pre, post, queues, cap, vmgap=0, reserve=None):
    st = {"clk": 0, "lastvm": -10**9}
    def flush_by(i):
        for q in queues:
            last = -1
            for n, e in enumerate(q):
                if isinstance(e, By) and e.idx <= i: last = n
            for _ in range(last + 1):
                e = q.popleft()
                if isinstance(e, Ins): out.append(e)
                elif isinstance(e, Group): out.extend(e.ins)
    for i, m in enumerate(main):
        flush_by(i)
        for x in pre.get(i, []): out.append(x)
        out.append(m)
        st["clk"] += 4 * m.passes
        fn, fc, fb = cap(m)
        if reserve:
            r = reserve(i); fn -= r; fc -= r; fb -= 4 * r
        fresh = True
        for x in post.get(i, []):
            out.append(x); fn -= 1; fc -= x.cost; fb -= x.size
        fc0 = fc if fc >= cap(m)[1] - 1 else -1
        for q in queues:
            while q and fn > 0 and fc > 0:
                e = q[0]
                if isinstance(e, After):
                    if i >= e.idx: q.popleft(); continue
                    break
                if isinstance(e, Skip):
                    if e.until is None: e.until = i + e.n
                    if i >= e.until: q.popleft(); continue
                    break
                if isinstance(e, By): q.popleft(); continue
                ism = isinstance(e, Ins) and e.kind == "mfma"
                if isvm(e) and st["clk"] - st["lastvm"] < (vmgap(i) if callable(vmgap) else vmgap): break
                if not ism and (e.cost > fc or e.size > fb) and not (fresh and (isinstance(e, Group) or e.cost > 2 or fc == fc0)): break
                q.popleft(); fresh = False
                if isvm(e): st["lastvm"] = st["clk"]
                if isinstance(e, Group): out.extend(e.ins); fc -= e.cost; fn -= e.n; fb -= e.size
                else:
                    out.append(e)
                    if ism: fn, fc, fb = cap(e); st["clk"] += 4 * e.passes
                    else: fc -= e.cost; fn -= 1; fb -= e.size
    for q in queues:
        while q:
            e = q.popleft()
            if isinstance(e, Ins): out.append(e)
            elif isinstance(e, Group): out.extend(e.ins)
```

```python
import sys
from core import *
from layout import *
from k1 import build_k1
from k2 import build_k2
from k3 import build_k3
st = len(sys.argv) > 2 and sys.argv[2] == "stamps"
k1, n1 = build_k1(st)
k2 = build_k2(st, *eval(sys.argv[3]), **eval(sys.argv[4] if len(sys.argv) > 4 else '{}')) if len(sys.argv) > 3 else build_k2(st)
k3 = build_k3(st)
ks = [k1, k2, k3]; launches = [(k1.name, n1, 256, 36864), (k2.name, 256, 256, 163840), (k3.name, 256, 256, 163840)]
hdr = ''.join(l for l in open('recurrent_scan__linear_kernel_hedgehog__swiglu_ffn__prompt.s.ref').readlines()[:12])
emit_file(sys.argv[1], launches, ks, hdr)
print("nops", [k.nops for k in ks], "ninstr", [len(k.final) for k in ks])
print(k2.alloc)
print('nstamps', k2.nstamps, k3.nstamps)
```

```python
import re

TRANS = ("v_exp_f32", "v_log_f32", "v_rcp_f32", "v_rsq_f32", "v_sqrt_f32", "v_sin_f32", "v_cos_f32")
NODEF = ("buffer_store", "global_store", "ds_write", "s_waitcnt", "s_barrier", "s_nop", "s_branch", "s_cbranch",
         "s_endpgm", "s_sleep", "s_setprio", "buffer_inv", "buffer_wbl2", "s_cmp", "s_bitcmp")
_reg1 = re.compile(r"^-?\|?([vas])(\d+)\|?$")
_regn = re.compile(r"^-?([vas])\[(\d+):(\d+)\]$")

def regs_of(tok):
    tok = tok.strip()
    if tok.startswith("abs(") or tok.startswith("-abs("):
        tok = tok[tok.index("(") + 1:-1]
    m = _reg1.match(tok)
    if m: return [m.group(1) + m.group(2)]
    m = _regn.match(tok)
    if m: return [m.group(1) + str(i) for i in range(int(m.group(2)), int(m.group(3)) + 1)]
    if tok in ("vcc", "exec"): return [tok]
    if tok in ("vcc_lo", "vcc_hi"): return ["vcc"]
    if tok in ("exec_lo", "exec_hi"): return ["exec"]
    if tok == "m0": return ["m0"]
    return []

COSTS = {"st4": 5, "ld": 2, "dsw": 3}
VOP3ONLY = ("v_fma_f32", "v_max3", "v_min3", "v_cvt_pk_bf16", "v_add3", "v_lshl_add", "v_lshl_or", "v_mul_lo", "v_mul_hi", "v_perm_b32", "v_dot2", "v_mfma",
            "v_bfe", "v_and_or", "v_mad", "v_readlane", "v_writelane", "v_pk_", "v_accvgpr", "v_med3", "v_add_lshl")
def _inline(p):
    try:
        v = float(p) if "." in p else int(p, 0)
    except ValueError: return True
    if "." in p: return v in (0.5, 1.0, 2.0, 4.0, -0.5, -1.0, -2.0, -4.0, 0.0)
    return -16 <= v <= 64
def _size(op, parts, kind):
    if kind in ("ds", "vm_load", "vm_store", "dma", "vm_atomic", "vm_misc", "smem", "mfma"): return 8
    if op.startswith(VOP3ONLY) or "_dpp" in op or "_sdwa" in op: return 8
    if op.startswith("s_movk"): return 4
    if any(not _inline(p) for p in parts): return 8
    if kind in ("valu", "trans"):
        if any(p.startswith("-") and not p[1:2].isdigit() for p in parts): return 8
        if len(parts) >= 3 and parts[2][0] != "v": return 8
    return 4

class Ins:
    __slots__ = ("text", "op", "kind", "reads", "writes", "tag", "passes", "srcc", "srcab", "cost", "data", "dpp", "note", "size")
    def __init__(self, text, tag=None):
        self.text = text.strip()
        self.tag = tag
        self.passes = 0; self.srcc = []; self.srcab = []; self.data = []; self.dpp = False; self.note = None; self.size = 4
        t = self.text.split(";")[0].strip()
        if t.endswith(":"):
            self.op = "label"; self.kind = "label"; self.reads = set(); self.writes = set(); self.cost = 0; return
        if t.startswith("@"):
            self.op = t.split()[0]; self.kind = "pseudo"; self.reads = set(); self.writes = set(); self.cost = 1
            self.tag = t.split()[1:] ; return
        sp = t.split(None, 1)
        op = sp[0]; self.op = op
        rest = sp[1] if len(sp) > 1 else ""
        parts = [p.strip() for p in rest.split(",")] if rest else []
        mods = ""
        if parts:
            last = parts[-1].split(None, 1)
            parts[-1] = last[0]
            mods = last[1] if len(last) > 1 else ""
        if op.startswith("s_waitcnt") or op in ("s_nop", "s_sleep", "s_setprio", "s_barrier", "s_endpgm") or op.startswith("s_branch") or op.startswith("s_cbranch"):
            parts = []
        opregs = [regs_of(p) for p in parts]
        modl = mods.split()
        reads = set(); writes = set()
        ndef = 1
        if op.startswith(NODEF): ndef = 0
        is_dma = op.startswith("buffer_load") and "lds" in modl
        is_atomic = op.startswith("buffer_atomic") or op.startswith("global_atomic")
        if is_dma: ndef = 0
        if is_atomic and "sc0" not in modl: ndef = 0
        if op.startswith("v_permlane32_swap") or op.startswith("v_permlane16_swap") or op.startswith("v_swap"): ndef = 2
        if op.startswith(("v_add_co", "v_addc_co", "v_sub_co")): ndef = 2
        for i, r in enumerate(opregs):
            if i < ndef: writes.update(r)
            else: reads.update(r)
        rw = (op.startswith(("v_fmac", "v_permlane", "v_swap", "v_writelane", "s_addk", "s_mulk", "s_cmov")) or "d16" in op or "_dpp" in op or "_sdwa" in op
              or (is_atomic and ndef == 1))
        if rw:
            for i in range(ndef): reads.update(opregs[i])
        if op.startswith("v_mfma"):
            self.kind = "mfma"; self.passes = 8 if "32x32x16" in op else 4
            self.srcab = opregs[1] + opregs[2]; self.srcc = opregs[3]
        elif op.startswith(TRANS): self.kind = "trans"
        elif op.startswith("v_"): self.kind = "valu"
        elif op.startswith("ds_"): self.kind = "ds"
        elif op.startswith(("buffer_", "global_")):
            if op in ("buffer_inv", "buffer_wbl2"): self.kind = "vm_misc"
            elif is_dma: self.kind = "dma"; reads.add("m0")
            elif is_atomic: self.kind = "vm_atomic"
            elif "store" in op:
                self.kind = "vm_store"
                if "x4" in op or "x3" in op:
                    self.data = opregs[0] if op.startswith("buffer_") else opregs[1]
            else: self.kind = "vm_load"
        elif op.startswith(("s_load", "s_buffer_load", "s_memtime", "s_memrealtime")): self.kind = "smem"
        elif op.startswith("s_"): self.kind = "salu"
        else: raise ValueError("unknown op " + t)
        if "_dpp" in op: self.dpp = True
        if op.startswith("s_and_saveexec") or op.startswith("s_or_saveexec"): writes.add("exec"); reads.add("exec")
        if op.startswith("v_cmp") and not writes: writes.add("vcc")
        self.reads = reads; self.writes = writes
        self.cost = 2 if self.kind == "trans" else 1
        if self.kind == "vm_store": self.cost = COSTS["st4"] if "x4" in op else 2
        elif self.kind in ("vm_load", "dma", "vm_atomic"): self.cost = COSTS["ld"]
        elif op.startswith("ds_write_b128"): self.cost = COSTS["dsw"]
        elif op.startswith(("ds_write2_b64", "ds_write_b64")): self.cost = 2
        self.size = _size(op, parts, self.kind)
    def states(self):
        if self.kind in ("label", "pseudo"): return 0
        if self.op == "s_nop": return int(self.text.split()[1], 0) + 1
        return 1
    def __repr__(self): return self.text

def I(text, tag=None): return Ins(text, tag)
def Is(text, tag=None): return [Ins(l, tag) for l in text.split("\n") if l.strip() and not l.strip().startswith(";")]

VMK = ("vm_load", "vm_store", "dma", "vm_atomic", "vm_misc")

def insert_waits(ins):
    out = []
    vm = []
    lg = []
    def need(q, pred):
        idx = -1
        for i, e in enumerate(q):
            if pred(e): idx = i
        return idx
    for x in ins:
        nv = None; nl = None
        if x.kind == "pseudo":
            tags = set(x.tag)
            if x.op == "@waitvm":
                i = need(vm, lambda e: e[1] in tags)
                if i >= 0: nv = len(vm) - 1 - i
            elif x.op == "@waitlgkm":
                i = need(lg, lambda e: e[1] in tags)
                if i >= 0: nl = len(lg) - 1 - i
            elif x.op == "@waitall":
                if vm: nv = 0
                if lg: nl = 0
            elif x.op == "@waitvmall":
                if vm: nv = 0
            elif x.op == "@waitlgkmall":
                if lg: nl = 0
            elif x.op == "@reset":
                vm = []; lg = []; continue
            else: raise ValueError(x.text)
        elif x.op.startswith("s_waitcnt") and x.note == "raw":
            out.append(x); continue
        elif x.op.startswith("s_waitcnt"):
            m = re.search(r"vmcnt\((\d+)\)", x.text)
            if m:
                n = int(m.group(1)); vm = vm[len(vm) - n:] if n < len(vm) and n > 0 else ([] if n == 0 else vm)
            m = re.search(r"lgkmcnt\((\d+)\)", x.text)
            if m:
                n = int(m.group(1)); lg = lg[len(lg) - n:] if n < len(lg) and n > 0 else ([] if n == 0 else lg)
            out.append(x); continue
        elif x.kind != "label":
            touched = x.reads | x.writes
            i = need(vm, lambda e: e[0] & touched)
            if i >= 0: nv = len(vm) - 1 - i
            i = need(lg, lambda e: e[0] & touched)
            if i >= 0: nl = len(lg) - 1 - i
        if nl is not None and any(e[2] for e in lg): nl = 0
        if nv is not None or nl is not None:
            s = []
            if nv is not None:
                if nv <= 62: s.append(f"vmcnt({nv})")
                else: s.append("vmcnt(62)"); nv = 62
                vm = vm[len(vm) - nv:] if nv > 0 else []
            if nl is not None:
                if nl > 14: nl = 14
                s.append(f"lgkmcnt({nl})")
                lg = lg[len(lg) - nl:] if nl > 0 else []
            out.append(Ins("s_waitcnt " + " ".join(s)))
        if x.kind == "pseudo": continue
        out.append(x)
        if x.kind in VMK:
            vm.append((set(x.writes), x.tag)); insert_waits.maxvm = max(getattr(insert_waits, 'maxvm', 0), len(vm))
        elif x.kind == "ds": lg.append((set(x.writes), x.tag, False))
        elif x.kind == "smem": lg.append((set(x.writes), x.tag, True))
    return out

def isv(r): return r[0] in "va" and r not in ("vcc",)
def iss(r): return (r[0] == "s" and r != "scc") or r == "vcc"

def required(p, c):
    n = 0
    pv = p.kind in ("valu", "trans"); cv = c.kind in ("valu", "trans")
    if pv:
        wv = {r for r in p.writes if isv(r)}; ws = {r for r in p.writes if iss(r)}
        if c.kind == "mfma" and wv & c.reads: n = max(n, 2)
        if p.kind == "trans" and c.kind == "valu" and wv & c.reads: n = max(n, 1)
        if c.op.startswith("v_permlane") and wv & c.reads: n = max(n, 2)
        if c.dpp and wv & c.reads: n = max(n, 2)
        if c.op.startswith(("v_readlane", "v_readfirstlane")) and wv & c.reads: n = max(n, 1)
        if ("_sdwa" in p.op) and cv and wv & (c.reads | c.writes): n = max(n, 1)
        if ws:
            if cv and ws & c.reads: n = max(n, 4 if c.op.startswith(("v_readlane", "v_writelane")) else 2)
            if c.kind in VMK + ("cond", "conddma") and ws & c.reads: n = max(n, 5)
            if c.kind in ("salu", "smem") and ws & c.reads: n = max(n, 2)
    if p.kind == "mfma":
        D = p.writes
        if c.kind == "mfma":
            if D & set(c.srcab): n = max(n, {4: 8, 8: 12}[p.passes])
            if D & set(c.srcc):
                if not (set(c.srcc) == D and c.passes == p.passes): n = max(n, {4: 6, 8: 10}[p.passes])
            elif D & c.writes and not (c.writes == D and c.passes == p.passes): n = max(n, {4: 6, 8: 10}[p.passes])
        elif D & (c.reads | c.writes): n = max(n, {4: 8, 8: 12}[p.passes])
        if cv and set(p.srcc) & c.writes: n = max(n, {4: 3, 8: 7}[p.passes])
    if p.kind == "salu" and "m0" in p.writes and c.kind in ("dma", "conddma"): n = max(n, 1)
    if p.kind == "vm_store" and p.data and set(p.data) & c.writes: n = max(n, 2)
    return n

def insert_nops(ins):
    out = []
    nn = 0
    for x in ins:
        if x.kind == "label":
            out.append(x); continue
        dist = 0; need = 0
        for p in reversed(out):
            if dist >= 13: break
            if p.kind == "label": continue
            r = required(p, x)
            if r - dist > need: need = r - dist
            dist += p.states()
        while need > 0:
            k = min(need, 16)
            out.append(Ins(f"s_nop {k-1}")); need -= k; nn += k
        out.append(x)
    return out, nn

class Kernel:
    def __init__(self, name, vgpr, agpr=0, sgpr=100):
        self.name = name; self.ins = []; self.vgpr = vgpr; self.agpr = agpr; self.sgpr = sgpr
    def __call__(self, s, tag=None):
        if isinstance(s, str): self.ins.extend(Is(s, tag))
        elif isinstance(s, Ins): self.ins.append(s)
        else: self.ins.extend(s)
    def finalize(self):
        w = insert_waits(self.ins)
        f, nn = insert_nops(w)
        self.final = f; self.nops = nn
        return f
    def text(self):
        f = self.finalize()
        body = "\n".join((x.text if x.kind == "label" else "    " + x.text) for x in f)
        return f".globl {self.name}\n.p2align 8\n.type {self.name},@function\n{self.name}:\n{body}\n"
    def desc(self):
        acc = (self.vgpr + 3) // 4 * 4
        nfv = acc + self.agpr if self.agpr else self.vgpr
        return (f".p2align 6\n.amdhsa_kernel {self.name}\n  .amdhsa_next_free_vgpr {nfv}\n  .amdhsa_next_free_sgpr {self.sgpr}\n"
                f"  .amdhsa_accum_offset {acc}\n  .amdhsa_group_segment_fixed_size 0\n  .amdhsa_kernarg_size 88\n"
                f"  .amdhsa_user_sgpr_count 2\n  .amdhsa_user_sgpr_kernarg_segment_ptr 1\n  .amdhsa_system_sgpr_workgroup_id_x 1\n"
                f"  .amdhsa_float_denorm_mode_32 3\n  .amdhsa_float_denorm_mode_16_64 3\n"
                f".end_amdhsa_kernel\n")

def emit_file(path, launches, kernels, header=""):
    s = header
    for (name, grid, block, lds) in launches:
        s += f"; @launch kernel={name} grid=({grid},1,1) block=({block},1,1) lds={lds}\n"
    s += '.amdgcn_target "amdgcn-amd-amdhsa--gfx950"\n.text\n'
    for k in kernels: s += k.text()
    s += ".p2align 8\nL_code_end:\n.fill 64, 4, 0xBF800000\n"
    s += '.section .rodata,"a"\n'
    for k in kernels: s += k.desc()
    open(path, "w").write(s)


def rt_begin(k, reg=96):
    k(f"s_memrealtime s[{reg}:{reg+1}]")
def rt_end(k, srd, base, wave="s3", reg=96, wg="s2"):
    k(f"""s_waitcnt vmcnt(0)
    s_memrealtime s[{reg+2}:{reg+3}]
    s_waitcnt lgkmcnt(0)
    s_lshl_b32 s{reg-1}, {wg}, 2
    s_add_u32 s{reg-1}, s{reg-1}, {wave}
    s_lshl_b32 s{reg-1}, s{reg-1}, 4
    s_add_u32 s{reg-1}, s{reg-1}, {base}
    v_mov_b32 v16, s{reg}
    v_mov_b32 v17, s{reg+1}
    v_mov_b32 v18, s{reg+2}
    v_mov_b32 v19, s{reg+3}
    buffer_store_dwordx4 v[16:19], off, s[{srd}:{srd+3}], s{reg-1}""")
```

```python
from core import *
from layout import *
from weave import *

NPAGE = 20
SCR = 15 * 8192
PHPAGE = 14
LOG2E = 0x3fb8aa3b
RING0 = 48; NRING = 6; DEPTH = 5
E0 = 72
def T(t): return 96 + 16 * t
def vr(a, n): return f"v[{a}:{a+n-1}]"
def q4(base, n): return [base + 4 * i for i in range(n)]
def xreg(kk, tb):
    n = kk * 2 + tb
    return f"a[{4*n}:{4*n+3}]" if n < 64 else vr(16 + 4 * (n - 64), 4)

class SR:
    def __init__(self): self.m = {}; self.nxt = 16
    def __getattr__(self, n):
        if n.startswith("_"): raise AttributeError
        return f"s{self.m[n]}"
    def new(self, *names, pair=False):
        for n in names:
            if pair:
                self.nxt += self.nxt & 1; self.m[n] = self.nxt; self.nxt += 2
            else: self.m[n] = self.nxt; self.nxt += 1
    def alias(self, n, old): self.m[n] = self.m[old]
    def p(self, n): return f"s[{self.m[n]}:{self.m[n]+1}]"
    def hi(self, n): return f"s{self.m[n]+1}"

def build(first, stamps=False, trace=0, tstart=0, stset=(), LOOK=5, LOOKSG=9, PRO=1, VG1=40, VG=64, VG5=64, VG3=40, LEADB=70, VGS=96, POLL=50, PB=3, TAIL=64, ACK=80, P3=60, C3=140, P4=230, C4=310, SACK=40, LATE=20, PSN=90, LOOK3=2, dbg='', TOUCH='', TW0=364, TW1=410, TW2=506, XAT=300,
          BARS=(0,1,2,3,4,5,6,7,8,9,11,13,15,17,20,23,26,29,32)):
    global NRING, DEPTH
    if trace: NRING, DEPTH = 5, 4
    k = Kernel("main_kernel", vgpr=256, agpr=256, sgpr=102)
    S = SR()
    S.new("tab", pair=True); S.nxt = 24
    S.new("i", "j", "wl", "wsg", "xb0", "xb1", "qb", "sb", "sgb", "phia", "ta0", "ta1", "tb0", "tb1", "t2", "t3", "t4")
    S.new("h0a", "h0b", "h1a", "h1b", "h2a", "h2b", "h3a", "h3b", "h4a", "h4b", "oa", "ob", "ota", "otb")
    S.new("phq", "kvp", "kvg", "fkl", "fko", "fo", "L", "nL", "scrw", "redb", "sp", "idx", "nonce")
    S.new("hi32", "lo32", "mown", "ml3", "msnd", pair=True)
    S.new("fol")
    S.m["wdb"] = 19; S.m["wd2"] = 20; S.m["snd"] = 21; S.m["xchw"] = 22; S.m["fin"] = 23
    for n, o in (("wot", "xb0"), ("sxc", "xb1"), ("g2", "sb"), ("bb0", "qb"), ("bb1", "phia"), ("rc1", "h2a"), ("rc2", "h0a"), ("rc3", "h0b"), ("g1a", "h1a"), ("sxo", "h1b"),
                 ("xo0", "kvp"), ("xo1", "redb"), ("xo2", "h2b"), ("c58", "fko"), ("xo3", "kvg"), ("c59", "fkl"), ("g1b", "phq")): S.alias(n, o)
    S.m["wda"] = 16; S.m["mwd"] = 12
    ST0 = S.nxt + (S.nxt & 1)
    nst = [0]
    def stamp():
        if not stamps: return []
        i = nst[0]; nst[0] += 1
        assert ST0 + 2 * i + 1 < 100, "too many stamps"
        return Is(f"{STAMPOP} s[{ST0+2*i}:{ST0+2*i+1}]")
    H = [(S.h0a, S.h0b), (S.h1a, S.h1b), (S.h2a, S.h2b), (S.h3a, S.h3b), (S.h4a, S.h4b)]
    SC = "" if "plainh" in dbg else (" nt sc1" if "nth" in dbg else " sc1")
    BSC = "" if "plainb" in dbg else " sc1"

    def h_unit(src, cls, tb, off, oq, tag):
        L = []; m = E0 + 8
        for p in range(2):
            g = [src + 4 * p + i for i in range(4)]; u = [src + 8 + 4 * p + i for i in range(4)]
            for i in range(4): L += Is(f"v_mul_f32 v{m+i}, {S.nL}, v{g[i]}")
            for i in range(4): L += Is(f"v_exp_f32 v{m+i}, v{m+i}\nv_mul_f32 v{u[i]}, v{g[i]}, v{u[i]}")
            for i in range(4): L += Is(f"v_add_f32 v{m+i}, 1.0, v{m+i}")
            for i in range(4): L += Is(f"v_rcp_f32 v{m+i}, v{m+i}")
            for i in range(4): L += Is(f"v_mul_f32 v{u[i]}, v{u[i]}, v{m+i}")
            L += Is(f"v_cvt_pk_bf16_f32 v{oq+2*p}, v{u[0]}, v{u[1]}\nv_cvt_pk_bf16_f32 v{oq+2*p+1}, v{u[2]}, v{u[3]}")
        L += Is(f"buffer_store_dwordx4 {vr(oq,4)}, v3, s[4:7], {H[cls][tb]} offen offset:{off}{SC}", tag)
        return L
    def softmax(P, X):
        L = []
        mx, mn, a, b, sp, sn = X, X + 1, X + 2, X + 3, X + 4, X + 5
        L += Is(f"v_max3_f32 v{mx}, v{P[0]}, v{P[1]}, v{P[2]}\nv_min3_f32 v{mn}, v{P[0]}, v{P[1]}, v{P[2]}")
        for i in range(3, 17, 2):
            L += Is(f"v_max3_f32 v{mx}, v{mx}, v{P[i]}, v{P[i+1]}\nv_min3_f32 v{mn}, v{mn}, v{P[i]}, v{P[i+1]}")
        L += Is(f"v_max_f32 v{mx}, v{mx}, v{P[17]}\nv_min_f32 v{mn}, v{mn}, v{P[17]}")
        L += Is(f"v_mul_f32 v{a}, {S.nL}, v{mx}\nv_mul_f32 v{b}, {S.L}, v{mn}")
        for i in range(18):
            L += Is(f"v_fma_f32 v{E0+i}, v{P[i]}, {S.L}, v{a}\nv_fma_f32 v{P[i]}, v{P[i]}, {S.nL}, v{b}")
            L += Is(f"v_exp_f32 v{E0+i}, v{E0+i}\nv_exp_f32 v{P[i]}, v{P[i]}")
            if i == 2: L += Is(f"v_add_f32 v{sp}, v{E0}, v{E0+1}\nv_add_f32 v{sn}, v{P[0]}, v{P[1]}")
            elif i > 2: L += Is(f"v_add_f32 v{sp}, v{sp}, v{E0+i-1}\nv_add_f32 v{sn}, v{sn}, v{P[i-1]}")
        L += Is(f"v_mov_b32 v{E0+18}, 0\nv_add_f32 v{sp}, v{sp}, v{E0+17}\nv_add_f32 v{sn}, v{sn}, v{P[17]}")
        L += Is(f"v_rcp_f32 v{sp}, v{sp}\nv_rcp_f32 v{sn}, v{sn}\nv_mov_b32 v{E0+19}, 0")
        for u in range(9):
            L += Is(f"v_mul_f32 v{E0+2*u}, v{E0+2*u}, v{sp}\nv_mul_f32 v{E0+2*u+1}, v{E0+2*u+1}, v{sp}\nv_cvt_pk_bf16_f32 v{E0+u}, v{E0+2*u}, v{E0+2*u+1}")
        for u in range(9):
            L += Is(f"v_mul_f32 v{P[2*u]}, v{P[2*u]}, v{sn}\nv_mul_f32 v{P[2*u+1]}, v{P[2*u+1]}, v{sn}\nv_cvt_pk_bf16_f32 v{E0+9+u}, v{P[2*u]}, v{P[2*u+1]}")
        return L
    spins = []
    DUM = E0 + 19
    def htouch(cls):
        if 'th' not in TOUCH: return []
        return Is(f"""v_lshrrev_b32 v{DUM}, 5, v0
        v_mul_u32_u24 v{DUM}, {HXROW // 128}, v{DUM}
        v_bfe_u32 v15, v0, 2, 3
        v_add_lshl_u32 v{DUM}, v{DUM}, v15, 7""") + [Group(Is(f"s_mov_b64 exec, {S.p('lo32')}\nbuffer_load_dword v{DUM}, v{DUM}, s[4:7], {H[cls][0]} offen sc1\ns_mov_b64 exec, -1"))]
    def setflag(addr, level, tags, vreg):
        return [I(f"v_mov_b32 v{vreg}, {S.nonce}"), I(f"v_add_u32 v{vreg}, {level}, v{vreg}"),
                Group(Is(f"@waitvm {tags}\ns_mov_b64 exec, 1\nbuffer_store_dword v{vreg}, off, s[4:7], {addr} sc1\ns_mov_b64 exec, -1"))]
    def wdaddr(v):
        t = E0 + 17
        return f"""s_mul_i32 {S.ta1}, {S.sp}, 41
        s_sub_u32 {S.ta1}, {S.ta1}, {0 if first else 2}
        v_lshrrev_b32 v{v}, 2, v0
        v_add_u32 v{v}, {S.ta1}, v{v}
        v_and_b32 v{t}, 1, v{v}
        v_lshlrev_b32 v{t+1}, 9, v{t}
        v_bfe_u32 v{t}, v{v}, 3, 2
        v_lshl_add_u32 v{t+1}, v{t}, 7, v{t+1}
        v_bfe_u32 v{t}, v{v}, 1, 2
        v_lshl_add_u32 v{t+1}, v{t}, 3, v{t+1}
        v_lshrrev_b32 v{t}, 5, v{v}
        v_add_lshl_u32 v{v}, v{t}, v{t+1}, 7
        s_lshr_b32 {S.ta1}, {S.idx}, 3
        s_lshl_b32 {S.ta1}, {S.ta1}, 12
        s_add_u32 {S.ta1}, {S.ta1}, {FLG}
        """
    def polltxt(line, vreg, mask):
        return (f"v_lshlrev_b32 v{vreg}, 5, v0\n" if line != S.ta1 else wdaddr(vreg)) + f"s_mov_b64 exec, {mask}\nbuffer_load_dword v{vreg}, v{vreg}, s[4:7], {line} offen sc1\ns_mov_b64 exec, -1"
    def poll(line, vreg, mask):
        return Group(Is(polltxt(line, vreg, mask)))
    def check(line, vreg, level, mask, name, treg):
        lab = f"{name}_{'f' if first else 'o'}" if name[0] == 'L' else name
        body = f"s_add_u32 {treg}, {S.nonce}, {level}\nv_subrev_u32 v{vreg}, {treg}, v{vreg}\nv_cmp_gt_u32 vcc, 8, v{vreg}\ns_andn2_b64 vcc, {mask}, vcc\n"
        spins.append((lab, line, vreg, body, mask))
        return Group(Is(body + f"s_cbranch_scc1 {lab}_spin\n{lab}_back:"))

    k(stamp())
    if stamps: k('s_mov_b32 s100, 0\ns_mov_b32 s101, 0')
    k(f"""
    s_cmp_ge_u32 s2, 256
    s_cbranch_scc1 LM_end
    s_load_dwordx8 s[44:51], s[0:1], 0
    s_load_dwordx4 s[8:11], s[0:1], 40
    s_load_dwordx2 s[52:53], s[0:1], 56
    s_load_dwordx4 s[56:59], s[0:1], 72
    v_lshrrev_b32 v1, 6, v0
    v_and_b32 v0, 63, v0
    v_readfirstlane_b32 s3, v1
    s_and_b32 {S.t2}, s2, 7
    s_lshr_b32 {S.idx}, s2, 3
    s_and_b32 {S.i}, {S.t2}, 1
    s_lshl_b32 {S.i}, {S.i}, 2
    s_and_b32 {S.t3}, {S.idx}, 3
    s_add_u32 {S.i}, {S.i}, {S.t3}
    s_lshr_b32 {S.sp}, {S.t2}, 1
    s_lshl_b32 {S.j}, {S.sp}, 3
    s_lshr_b32 {S.t3}, {S.idx}, 2
    s_add_u32 {S.j}, {S.j}, {S.t3}
    s_getpc_b64 s[14:15]
    L_pc:
    s_lshl_b32 {S.t3}, {S.j}, 5
    s_add_u32 {S.t3}, {S.t3}, L_postab-L_pc
    s_add_u32 s12, s14, {S.t3}
    s_addc_u32 s13, s15, 0
    s_load_dwordx8 s[16:23], s[12:13], 0
    s_max_u32 {S.t3}, s2, 18
    s_min_u32 {S.t3}, {S.t3}, 161
    s_lshl_b32 {S.t3}, {S.t3}, 2
    s_add_u32 {S.t3}, {S.t3}, L_kkhtab-L_pc-72
    s_add_u32 s12, s14, {S.t3}
    s_addc_u32 s13, s15, 0
    s_load_dword s61, s[12:13], 0
    s_lshl_b32 {S.wl}, s3, 11
    s_lshl_b32 {S.xb0}, {S.i}, 3
    s_lshl_b32 {S.t3}, s3, 1
    s_add_u32 {S.xb0}, {S.xb0}, {S.t3}
    s_mul_i32 {S.xb0}, {S.xb0}, {36*1024}
    s_add_u32 {S.xb0}, {S.xb0}, {XN}
    s_add_u32 {S.xb1}, {S.xb0}, {36*1024}
    s_mul_i32 {S.qb}, {S.j}, {9*8192}
    s_add_u32 {S.qb}, {S.qb}, {S.wl}
    s_add_u32 {S.qb}, {S.qb}, {W1Q}
    s_mul_i32 {S.sb}, {S.j}, {5*8192}
    s_add_u32 {S.sb}, {S.sb}, {S.wl}
    s_add_u32 {S.sb}, {S.sb}, {W1S}
    v_lshlrev_b32 v1, 4, v0
    s_mov_b32 s6, {WS_BYTES}
    s_mov_b32 s7, 0x20000
    v_bfe_u32 v15, v0, 4, 1
    v_lshrrev_b32 v14, 5, v0
    v_lshlrev_b32 v5, 12, v15
    v_lshl_add_u32 v5, v14, 9, v5
    v_bfe_u32 v6, v0, 2, 2
    v_lshl_add_u32 v5, v6, 6, v5
    v_and_b32 v6, 3, v0
    v_lshl_add_u32 v5, v6, 3, v5
    v_xor_b32 v6, 1, v15
    v_lshl_add_u32 v6, v6, 5, v5
    v_lshl_add_u32 v5, v15, 5, v5
    v_add_u32 v7, 0x10000, v5
    v_add_u32 v8, 0x10000, v6
    v_add_u32 v9, 0x20000, v5
    v_add_u32 v10, 0x20000, v6
    v_mov_b32 v201, 0
    v_mov_b32 v163, {OOB}
    v_lshlrev_b32 v96, 5, v0
    v_cmp_gt_u32 vcc, 36, v0
    v_min_u32 v164, 36, v0
    v_lshlrev_b32 v164, 8, v164
    v_cndmask_b32 v96, v163, v96, vcc
    s_lshl_b32 {S.t3}, s3, 5
    s_add_u32 {S.t3}, {S.t3}, {13*8192}
    v_add_u32 v164, {S.t3}, v164
    v_lshrrev_b32 v160, 3, v0
    v_bfe_u32 v161, v0, 2, 1
    v_bfe_u32 v162, v0, 1, 1
    v_xor_b32 v162, v162, v161
    v_and_b32 v166, 1, v0
    v_mul_u32_u24 v97, 3456, v160
    s_mul_i32 {S.t3}, {S.j}, 36
    v_add_u32 v97, {S.t3}, v97
    v_add_u32 v98, 32, v97
    v_lshl_add_u32 v97, v166, 4, v97
    v_add_u32 v167, 1, v162
    v_mul_u32_u24 v167, 1152, v167
    v_mad_u32_u24 v97, v167, v161, v97
    v_cmp_lt_u32 vcc, v161, v162
    v_lshl_add_u32 v167, v162, 1, v166
    v_lshl_add_u32 v167, v161, 2, v167
    v_cndmask_b32 v97, v97, v163, vcc
    v_cmp_eq_u32 vcc, 2, v167
    v_lshlrev_b32 v165, 6, v160
    v_lshl_add_u32 v165, v161, 12, v165
    v_cndmask_b32 v98, v163, v98, vcc
    v_and_b32 v167, 3, v0
    v_lshl_add_u32 v165, v167, 4, v165
    s_and_b32 {S.t3}, s3, 1
    s_lshl_b32 {S.t3}, {S.t3}, 1
    v_add_u32 v160, {S.t3}, v14
    s_lshr_b32 {S.t4}, s3, 1
    v_bfe_u32 v161, v0, 1, 1
    v_xor_b32 v161, {S.t4}, v161
    v_lshl_add_u32 v161, v160, 1, v161
    v_bfe_u32 v162, v0, 2, 3
    v_lshl_add_u32 v161, v161, 6, v162
    s_movk_i32 {S.t4}, 9216
    v_mul_lo_u32 v99, v161, {S.t4}
    v_lshl_add_u32 v99, v166, 4, v99
    v_lshlrev_b32 v166, 13, v160
    v_lshl_add_u32 v166, v162, 6, v166
    v_lshl_add_u32 v166, v167, 4, v166
    v_cmp_eq_u32 vcc, 0, v160
    s_nop 1
    v_cndmask_b32 v167, v163, v166, vcc
    s_waitcnt lgkmcnt(0)
    """)

    def wave_sum(kk, v, sreg):
        for sh in (1, 2, 4, 8):
            kk(f"v_add_f32_dpp v{v}, v{v}, v{v} row_shr:{sh} row_mask:0xf bank_mask:0xf bound_ctrl:0")
        kk(f"v_add_f32_dpp v{v}, v{v}, v{v} row_bcast:15 row_mask:0xa bank_mask:0xf")
        kk(f"v_add_f32_dpp v{v}, v{v}, v{v} row_bcast:31 row_mask:0xc bank_mask:0xf")
        kk(f"v_readlane_b32 s{sreg}, v{v}, 63")
    def rnd(kk, v): kk(f"v_cvt_pk_bf16_f32 v{v}, v{v}, v{v}\nv_lshlrev_b32 v{v}, 16, v{v}")
    LNB = 13 * 8192; WDB_L = 15 * 8192
    if 'st' in dbg: k(stamp())
    k(f"""
    s_mov_b32 s4, s58
    s_mov_b32 s5, s59
    s_mov_b32 s68, s44
    s_mov_b32 s69, s45
    s_mov_b32 s70, {2048*1152}
    s_mov_b32 s71, 0x20000
    s_mov_b32 s72, s46
    s_mov_b32 s73, s47
    s_mov_b32 s74, {576*3456}
    s_mov_b32 s75, 0x20000
    s_lshl_b32 s41, {S.i}, 8
    s_lshl_b32 s42, {S.j}, 3
    s_add_u32 s41, s41, s42
    s_lshl_b32 s42, s3, 1
    s_add_u32 s41, s41, s42
    s_mul_i32 s41, s41, 1152
    buffer_load_dwordx4 v[100:103], v96, s[68:71], s41 offen
    buffer_load_dwordx4 v[104:107], v96, s[68:71], s41 offen offset:16
    buffer_load_dwordx4 v[132:135], v96, s[68:71], s41 offen offset:1152
    buffer_load_dwordx4 v[136:139], v96, s[68:71], s41 offen offset:1168
    s_lshl_b32 s42, s3, 6
    s_lshl_b32 s43, {S.i}, 3
    s_add_u32 s42, s42, s43
    s_mul_i32 s42, s42, 3456
    """)
    for r in range(3):
        k(f"""buffer_load_dwordx4 v[{168+8*r}:{171+8*r}], v97, s[72:75], s42 offen
        buffer_load_dword v{172+8*r}, v98, s[72:75], s42 offen
        buffer_load_dword v{173+8*r}, v98, s[72:75], s42 offen offset:1152
        buffer_load_dword v{174+8*r}, v98, s[72:75], s42 offen offset:2304""")
        if r < 2: k(f"s_add_u32 s42, s42, {256*3456}")
    k(f"""
    s_cmp_ge_u32 s3, 2
    s_cselect_b32 s8, s10, s8
    s_cselect_b32 s9, s11, s9
    s_mov_b32 s10, {576*9216}
    s_mov_b32 s11, 0x20000
    s_mul_i32 s42, {S.i}, {8*9216}
    s_lshl_b32 s43, {S.j}, 5
    s_add_u32 s42, s42, s43
    s_add_u32 s42, s42, 8192
    buffer_load_dwordx4 v[192:195], v99, s[8:11], s42 offen
    s_add_u32 s42, s42, {512*9216}
    buffer_load_dwordx4 v[196:199], v99, s[8:11], s42 offen
    s_cmp_lg_u32 s2, 0
    s_cbranch_scc1 LS_nonce
    s_cmp_lg_u32 s3, 0
    s_cbranch_scc1 LS_nonce
    s_memrealtime s[42:43]
    s_waitcnt lgkmcnt(0)
    s_lshl_b32 s42, s42, 4
    s_max_u32 s42, s42, 16
    v_mov_b32 v200, s42
    v_mov_b32 v201, 0
    global_store_dword v201, v200, s[56:57] sc1
    LS_nonce:
    s_cmp_lg_u32 s3, 1
    s_cbranch_scc1 LS_nophi
    s_cmp_ge_u32 {S.i}, 6
    s_cbranch_scc1 LS_nophi
    s_mov_b32 s76, s48
    s_mov_b32 s77, s49
    s_mov_b32 s78, {32*648}
    s_mov_b32 s79, 0x20000
    s_cmp_ge_u32 {S.i}, 3
    s_cselect_b32 s42, 1, 0
    s_mul_i32 s43, s42, 3
    s_sub_u32 s43, {S.i}, s43
    v_and_b32 v203, 31, v0
    v_lshrrev_b32 v204, 5, v0
    v_bfe_u32 v205, v203, 2, 1
    v_lshrrev_b32 v206, 3, v203
    v_lshlrev_b32 v206, 2, v206
    v_and_b32 v207, 3, v203
    v_add_u32 v206, v206, v207
    s_lshl_b32 s42, s42, 4
    v_add_u32 v206, s42, v206
    s_mul_i32 s42, {S.j}, 648
    v_lshlrev_b32 v207, 1, v206
    v_add_u32 v207, s42, v207
    v_mov_b32 v212, {OOB}
    v_cmp_gt_u32 vcc, 18, v206
    s_nop 1
    v_cndmask_b32 v207, v212, v207, vcc
    v_mov_b32 v228, 0
    v_mov_b32 v229, 0
    v_mov_b32 v230, 0
    v_mov_b32 v231, 0
    s_cmp_eq_u32 s43, 2
    s_cbranch_scc1 LS_p2
    v_cmp_eq_u32 vcc, s43, v205
    s_nop 1
    v_cndmask_b32 v207, v212, v207, vcc
    v_mul_u32_u24 v208, {4*36}, v204
    v_add_u32 v207, v207, v208
    """)
    next(x for x in k.ins if x.op == 'global_store_dword').kind = 'cond'
    c = []
    for i_ in range(8):
        d = (i_ & 3) + 8 * (i_ >> 2)
        c += Is(f"buffer_load_ushort v{224+i_}, v207, s[76:79], 0 offen offset:{d*36}")
    c += Is(f"""s_branch LS_p3
    LS_p2:
    v_cmp_eq_u32 vcc, 0, v204
    s_nop 1
    v_cndmask_b32 v207, v212, v207, vcc
    v_cmp_eq_u32 vcc, 0, v205
    s_nop 1
    v_cndmask_b32 v208, v212, v207, vcc
    v_cndmask_b32 v209, v207, v212, vcc
    buffer_load_ushort v224, v208, s[76:79], 0 offen offset:{16*36}
    buffer_load_ushort v225, v208, s[76:79], 0 offen offset:{17*36}
    buffer_load_ushort v226, v209, s[76:79], 0 offen offset:{16*36}
    buffer_load_ushort v227, v209, s[76:79], 0 offen offset:{17*36}
    LS_p3:
    s_waitcnt vmcnt(0)
    v_lshl_or_b32 v216, v225, 16, v224
    v_lshl_or_b32 v217, v227, 16, v226
    v_lshl_or_b32 v218, v229, 16, v228
    v_lshl_or_b32 v219, v231, 16, v230
    s_mul_i32 s42, {S.j}, 6
    s_add_u32 s42, s42, {S.i}
    s_lshl_b32 s42, s42, 10
    s_add_u32 s42, s42, {PHIA}
    buffer_store_dwordx4 v[216:219], v1, s[4:7], s42 offen sc1
    LS_nophi:""")
    for x in c:
        if x.kind in VMK: x.kind = "cond"
        if x.op == "s_waitcnt": x.note = "raw"
    k(c)
    if 'st' in dbg: k(stamp())
    k("v_cmp_gt_u32 vcc, 36, v0")
    rows = []
    for r in range(2):
        kk = Kernel("tmp", 64)
        P = 100 + 32 * r; F = 108 + 32 * r; a_ = 124 + 32 * r; m_ = a_ + 1; t_ = a_ + 2; d_ = a_ + 3
        for i_ in range(8): kk(f"v_lshlrev_b32 v{F+2*i_}, 16, v{P+i_}\nv_and_b32 v{F+1+2*i_}, 0xffff0000, v{P+i_}")
        kk(f"v_add_f32 v{a_}, v{F}, v{F+1}")
        for i_ in range(2, 16): kk(f"v_add_f32 v{a_}, v{a_}, v{F+i_}")
        wave_sum(kk, a_, 41 + r)
        kk(f"v_mov_b32 v{m_}, 0x3ae38e39\nv_mul_f32 v{m_}, s{41+r}, v{m_}")
        kk(f"v_sub_f32 v{t_}, v{F}, v{m_}\nv_mul_f32 v{a_}, v{t_}, v{t_}")
        for i_ in range(1, 16): kk(f"v_sub_f32 v{t_}, v{F+i_}, v{m_}\nv_fmac_f32 v{a_}, v{t_}, v{t_}")
        kk(f"v_cndmask_b32 v{a_}, 0, v{a_}, vcc")
        wave_sum(kk, a_, 41 + r)
        kk(f"v_mov_b32 v{d_}, 0x3ae38e39\nv_mul_f32 v{d_}, s{41+r}, v{d_}")
        rnd(kk, m_); rnd(kk, d_)
        kk(f"v_add_f32 v{d_}, 0x3727c5ac, v{d_}")
        rnd(kk, d_)
        kk(f"v_sqrt_f32 v{d_}, v{d_}")
        rnd(kk, d_)
        kk(f"v_rcp_f32 v{d_}, v{d_}")
        for i_ in range(16): kk(f"v_sub_f32 v{F+i_}, v{F+i_}, v{m_}")
        for i_ in range(8): kk(f"v_cvt_pk_bf16_f32 v{P+i_}, v{F+2*i_}, v{F+1+2*i_}")
        for i_ in range(8): kk(f"v_lshlrev_b32 v{F+2*i_}, 16, v{P+i_}\nv_and_b32 v{F+1+2*i_}, 0xffff0000, v{P+i_}")
        for i_ in range(16): kk(f"v_mul_f32 v{F+i_}, v{F+i_}, v{d_}")
        for i_ in range(8): kk(f"v_cvt_pk_bf16_f32 v{P+i_}, v{F+2*i_}, v{F+1+2*i_}")
        kk(f"ds_write_b128 v164, v[{P}:{P+3}] offset:{16*r}\nds_write_b128 v164, v[{P+4}:{P+7}] offset:{128+16*r}")
        rows.append(kk.ins)
    for n_, (x, y) in enumerate(zip(*rows)):
        k([x, y])
        if n_ == 20: k("global_load_dword v202, v201, s[56:57] sc1")
    if 'st' in dbg: k(stamp())
    k(f"""
    s_mul_i32 s41, {S.j}, 9
    s_add_u32 s41, s41, s3
    s_lshl_b32 s41, s41, 13
    s_lshl_b32 s42, {S.i}, 9
    s_add_u32 s41, s41, s42
    s_add_u32 s41, s41, {W1Q}
    """)
    for r in range(3):
        b_ = 168 + 8 * r
        k(f"v_or_b32 v{b_}, v{b_}, v{b_+4}\nv_or_b32 v{b_+1}, v{b_+1}, v{b_+5}\nv_or_b32 v{b_+2}, v{b_+2}, v{b_+6}")
        if r == 2: k(f"s_cmp_eq_u32 s3, 0\ns_cselect_b32 s41, s41, {OOB}")
        k(f"buffer_store_dwordx4 v[{b_}:{b_+3}], v165, s[4:7], s41 offen sc1")
        if r < 2: k(f"s_add_u32 s41, s41, {4*8192}")
    k(f"""
    s_mul_i32 s41, {S.j}, {5*8192}
    s_add_u32 s41, s41, s42
    s_lshr_b32 s43, s3, 1
    s_lshl_b32 s43, s43, 12
    s_add_u32 s41, s41, s43
    s_add_u32 s41, s41, {W1S}
    buffer_store_dwordx4 v[192:195], v166, s[4:7], s41 offen sc1
    s_add_u32 s41, s41, {4*8192}
    buffer_store_dwordx4 v[196:199], v167, s[4:7], s41 offen sc1
    s_lshl_b32 s41, {S.i}, 3
    s_lshr_b32 s42, {S.j}, 2
    s_add_u32 s41, s41, s42
    s_mul_i32 s41, s41, {36*1024}
    s_and_b32 s42, {S.j}, 3
    s_lshl_b32 s42, s42, 7
    s_add_u32 s41, s41, s42
    s_lshl_b32 s42, s3, 12
    s_add_u32 s41, s41, s42
    s_add_u32 s41, s41, {XN}
    s_add_u32 s42, s41, 0x4000
    s_add_u32 s43, s41, 0x8000
    s_cmp_eq_u32 s3, 0
    s_cselect_b32 s43, s43, {OOB}
    s_lshl_b32 s44, s3, 10
    s_add_u32 s44, s44, {LNB}
    v_add_u32 v160, s44, v1
    v_lshrrev_b32 v161, 3, v0
    v_lshlrev_b32 v161, 9, v161
    v_and_b32 v162, 7, v0
    v_lshl_add_u32 v161, v162, 4, v161
    s_waitcnt lgkmcnt(0)
    s_barrier
    ds_read_b128 v[100:103], v160
    ds_read_b128 v[104:107], v160 offset:4096
    ds_read_b128 v[108:111], v160 offset:8192
    buffer_store_dwordx4 v[100:103], v161, s[4:7], s41 offen sc1
    buffer_store_dwordx4 v[104:107], v161, s[4:7], s42 offen sc1
    buffer_store_dwordx4 v[108:111], v161, s[4:7], s43 offen sc1
    s_lshl_b32 s41, {S.i}, 2
    s_add_u32 s41, s41, s3
    s_lshl_b32 {S.fol}, s41, 12
    s_add_u32 {S.fol}, {S.fol}, {FLG}
    s_lshl_b32 s41, {S.j}, 7
    s_add_u32 {S.fo}, {S.fol}, s41
    """)
    k(f"""
    s_lshl_b32 s48, s61, 5
    s_mul_i32 s49, s2, 36
    s_cmp_lt_u32 s2, 18
    s_cselect_b32 s52, s50, s52
    s_cselect_b32 s53, s51, s53
    s_mov_b32 s54, {4608*1152}
    s_cselect_b32 s54, {576*1152}, s54
    s_mov_b32 s55, 0x20000
    s_mov_b32 s44, 2
    s_mov_b32 s45, 8
    s_mov_b32 s46, 4
    s_cselect_b32 s47, 18, 16
    s_cselect_b32 s48, s49, s48
    s_sub_u32 s49, s2, 16
    s_cmp_lt_u32 s49, 2
    s_cbranch_scc0 LS_d1
    s_mul_i32 s48, s49, 288
    s_add_u32 s48, s48, 16
    s_mov_b32 s44, 18
    s_mov_b32 s45, 36
    s_mov_b32 s46, 72
    s_movk_i32 s47, 144
    LS_d1:
    s_and_b32 s49, s3, 1
    s_mul_i32 s49, s49, s46
    s_add_u32 s48, s48, s49
    s_lshr_b32 s49, s3, 1
    s_mul_i32 s49, s49, s47
    s_add_u32 s48, s48, s49
    s_mul_i32 s48, s48, 1152
    s_cmp_ge_u32 s2, 162
    s_cselect_b32 s48, {OOB}, s48
    s_movk_i32 s51, 1152
    """)
    for n in range(9):
        d_ = T(9) + n
        k(f"""v_add_u32 v{d_}, {64*n}, v0
        v_mul_u32_u24 v97, 911, v{d_}
        v_lshrrev_b32 v97, 16, v97
        v_mul_u32_u24 v98, 72, v97
        v_sub_u32 v{d_}, v{d_}, v98
        v_and_b32 v98, 1, v97
        v_bfe_u32 v99, v97, 1, 1
        v_mad_u32_u24 v98, v99, s44, v98
        v_lshrrev_b32 v99, 2, v97
        v_mad_u32_u24 v98, v99, s45, v98
        v_mul_u32_u24 v98, s51, v98
        v_lshl_add_u32 v{d_}, v{d_}, 4, v98
        v_add_u32 v{d_}, s48, v{d_}""")
    k(f"""
    v_lshrrev_b32 v{T(9)+14}, 4, v0
    v_lshlrev_b32 v{T(9)+14}, 3, v{T(9)+14}
    v_bfe_u32 v97, v0, 2, 2
    v_add_u32 v{T(9)+14}, v{T(9)+14}, v97
    v_mul_u32_u24 v{T(9)+14}, 1152, v{T(9)+14}
    v_and_b32 v97, 3, v0
    v_lshl_add_u32 v{T(9)+14}, v97, 3, v{T(9)+14}
    s_mul_i32 s41, s3, 288
    s_add_u32 s41, s41, {WDB_L}
    v_add_u32 v{T(9)+14}, s41, v{T(9)+14}
    s_sub_u32 s41, s2, 18
    s_mul_i32 s42, s3, 144
    s_add_u32 s42, s42, s41
    s_mul_i32 s44, s42, 5120
    s_add_u32 s44, s44, {WDA}
    s_lshl_b32 s45, s42, 11
    s_add_u32 s46, s45, {WD2}
    s_add_u32 s45, s45, {WDB}
    s_add_u32 s47, s44, 2048
    s_add_u32 s50, s44, 4096
    s_mul_i32 s51, s3, 18
    s_add_u32 s51, s51, s2
    s_mul_i32 s51, s51, 9216
    s_add_u32 s51, s51, {WOT}
    s_mov_b32 s43, 0
    s_cmp_ge_u32 s41, {HP0[1]}
    s_cselect_b32 s43, 1, s43
    s_cmp_ge_u32 s41, {HP0[2]}
    s_cselect_b32 s43, 2, s43
    s_cmp_ge_u32 s41, {HP0[3]}
    s_cselect_b32 s43, 3, s43
    """)
    for t_ in range(5):
        if t_ < 4:
            k(f"""s_sub_u32 s42, {t_}, s43
            s_and_b32 s42, s42, 3
            s_cmp_eq_u32 s42, 1
            s_cselect_b32 s48, s45, s46
            s_cmp_eq_u32 s42, 2
            s_cselect_b32 s48, s44, s48
            s_cmp_eq_u32 s42, 3
            s_cselect_b32 s48, s47, s48""")
        else: k("s_mov_b32 s48, s50")
        k(f"""s_add_u32 s42, s51, {t_*2048}
            s_cmp_lt_u32 s2, 18
            s_cselect_b32 s48, s42, s48
            s_cmp_ge_u32 s2, 162
            s_cselect_b32 s48, {OOB}, s48
            v_add_u32 v{T(9)+9+t_}, s48, v1""")
    k(f"""s_mov_b32 s41, 400000
    LS_nw:
    v_readfirstlane_b32 {S.nonce}, v202
    s_cmp_lg_u32 {S.nonce}, 0
    s_cbranch_scc1 LS_nok
    global_load_dword v202, v201, s[56:57] sc1
    s_waitcnt vmcnt(0)
    s_sub_u32 s41, s41, 1
    s_cmp_lg_u32 s41, 0
    s_cbranch_scc1 LS_nw
    LS_nok:
    s_add_u32 s41, {S.nonce}, 1
    v_mov_b32 v200, s41
    s_waitcnt vmcnt(0)
    s_mov_b64 exec, 1
    buffer_store_dword v200, off, s[4:7], {S.fo} sc1
    s_mov_b64 exec, -1
    @reset
    """)
    k(stamp())
    c = Is(f"""
    s_cmp_eq_u32 s3, 3
    s_cbranch_scc1 LS_poll
    s_lshr_b32 s41, s3, 1
    s_and_b32 s42, s3, 1
    s_mul_i32 s42, s42, 8
    s_mul_i32 s43, {S.i}, 72
    s_add_u32 s42, s42, s43
    s_mul_i32 s42, s42, 9216
    s_lshl_b32 s43, {S.j}, 8
    s_add_u32 s42, s42, s43
    s_movk_i32 s43, 9216
    v_mul_lo_u32 v96, v0, s43
    buffer_load_dword v100, v96, s[8:11], s42 offen
    s_cmp_eq_u32 s41, 0
    s_cbranch_scc1 LS_t2
    s_add_u32 s43, s42, {8*9216}
    buffer_load_dword v102, v96, s[8:11], s43 offen
    LS_t2:
    s_mul_i32 s41, {S.idx}, 3
    s_add_u32 s41, s41, s3
    s_lshl_b32 s41, s41, 10
    v_and_b32 v97, 7, v0
    v_lshlrev_b32 v97, 7, v97
    v_add_u32 v97, s41, v97
    v_min_u32 v97, L_code_end-L_pc, v97
    global_load_dword v103, v97, s[14:15]
    """)
    c += Is(f"""s_branch LS_join
    LS_poll:
    v_lshlrev_b32 v96, 7, v0
    v_and_b32 v97, 31, v0
    v_lshlrev_b32 v97, 12, v97
    s_lshl_b32 s41, {S.i}, 14
    s_add_u32 s41, s41, {FLG}
    s_add_u32 s42, s41, 8192
    s_lshl_b32 s43, {S.j}, 7
    s_add_u32 s43, s43, {FLG}
    s_add_u32 s44, {S.nonce}, 1
    s_mov_b32 s45, 400000
    LS_pl:
    buffer_load_dword v100, v96, s[4:7], s41 offen sc1
    buffer_load_dword v101, v96, s[4:7], s42 offen sc1
    buffer_load_dword v102, v97, s[4:7], s43 offen sc1
    s_waitcnt vmcnt(0)
    v_subrev_u32 v100, s44, v100
    v_subrev_u32 v101, s44, v101
    v_subrev_u32 v102, s44, v102
    v_max3_u32 v100, v100, v101, v102
    v_cmp_le_u32 vcc, 8, v100
    s_nop 4
    s_cbranch_vccz LS_join
    s_sub_u32 s45, s45, 1
    s_cmp_lg_u32 s45, 0
    s_cbranch_scc1 LS_pl
    LS_join:""")
    for x in c:
        if x.kind in VMK: x.kind = "cond" if x.kind != "dma" else "conddma"
        if x.op == "s_waitcnt": x.note = "raw"
    k(c)
    k("s_mov_b32 s12, s52\ns_mov_b32 s13, s53\ns_mov_b32 s14, s54\ns_mov_b32 s15, 0x20000\ns_barrier")
    k(stamp())
    setup = Is(f"""
    s_lshr_b32 {S.t3}, s3, 1
    s_and_b32 {S.t4}, s3, 1
    s_lshl_b32 {S.wsg}, {S.t3}, 12
    s_lshl_b32 {S.t2}, {S.t4}, 11
    s_add_u32 {S.wsg}, {S.wsg}, {S.t2}
    s_mul_i32 {S.sgb}, {S.t4}, {32*9216}
    s_lshl_b32 {S.t2}, {S.j}, 8
    s_add_u32 {S.sgb}, {S.sgb}, {S.t2}
    v_lshrrev_b32 v2, 2, v0
    s_movk_i32 {S.t2}, 9216
    v_mul_lo_u32 v2, v2, {S.t2}
    v_bfe_u32 v3, v0, 1, 1
    v_xor_b32 v3, {S.t3}, v3
    v_lshlrev_b32 v3, 5, v3
    v_and_b32 v4, 1, v0
    v_lshlrev_b32 v4, 4, v4
    v_add3_u32 v2, v2, v3, v4
    s_mul_i32 {S.phia}, {S.j}, 6144
    s_add_u32 {S.phia}, {S.phia}, {S.wl}
    s_add_u32 {S.phia}, {S.phia}, {PHIA}
    """)
    wdt = []
    for b_ in range(9):
        wdt += Is(f"ds_read_b64_tr_b16 {vr(T(6)+4*b_,2)}, v{T(9)+14} offset:{32*b_}\nds_read_b64_tr_b16 {vr(T(6)+4*b_+2,2)}, v{T(9)+14} offset:{32*b_+4*1152}")
    for b_ in range(9):
        wdt += Is(f"buffer_store_dwordx4 {vr(T(6)+4*b_,4)}, v{T(9)+9+b_//2}, s[4:7], 0 offen offset:{(b_&1)*1024} sc1", "wd")
    setup2 = Is(f"""
    v_bfe_u32 v4, v0, 4, 1
    s_mov_b32 {S.t2}, {HXROW}
    v_mul_lo_u32 v4, v4, {S.t2}
    v_and_b32 v13, 15, v0
    v_lshl_add_u32 v4, v13, 4, v4
    v_lshl_add_u32 v3, v14, 8, v4
    v_cmp_eq_u32 vcc, 0, v14
    v_mov_b32 v15, {OOB}
    s_mul_i32 {S.scrw}, s3, 10240
    v_cndmask_b32 v4, v15, v4, vcc
    s_add_u32 {S.scrw}, {S.scrw}, {SCR}
    v_and_b32 v11, 31, v0
    v_mul_u32_u24 v11, 160, v11
    v_add_u32 v11, {S.scrw}, v11
    v_lshrrev_b32 v12, 2, v0
    v_mul_u32_u24 v12, 160, v12
    v_and_b32 v15, 3, v0
    v_lshl_add_u32 v12, v15, 3, v12
    v_add_u32 v12, {S.scrw}, v12
    v_and_b32 v15, 31, v0
    v_min_u32 v15, 18, v15
    v_lshrrev_b32 v13, 4, v15
    v_mul_u32_u24 v13, 3072, v13
    v_and_b32 v15, 15, v15
    v_lshl_add_u32 v13, v15, 4, v13
    v_lshl_add_u32 v13, v14, 8, v13
    v_lshlrev_b32 v0, 2, v0
    s_lshl_b32 {S.t4}, {S.i}, 4
    s_lshl_b32 {S.t2}, s3, 2
    s_add_u32 {S.t4}, {S.t4}, {S.t2}
    s_mul_i32 {S.t4}, {S.t4}, {HXROW}
    s_add_u32 {S.t4}, {S.t4}, {HX}
    s_add_u32 {S.h0a}, {S.t4}, s16
    s_add_u32 {S.h1a}, {S.t4}, s17
    s_add_u32 {S.h2a}, {S.t4}, s18
    s_add_u32 {S.h3a}, {S.t4}, s19
    s_add_u32 {S.h4a}, {S.t4}, s20
    s_add_u32 {S.oa}, {S.t4}, s21
    s_add_u32 {S.ota}, {S.t4}, s22
    s_add_u32 {S.h0b}, {S.h0a}, {2*HXROW}
    s_add_u32 {S.h1b}, {S.h1a}, {2*HXROW}
    s_add_u32 {S.h2b}, {S.h2a}, {2*HXROW}
    s_add_u32 {S.h3b}, {S.h3a}, {2*HXROW}
    s_add_u32 {S.h4b}, {S.h4a}, {2*HXROW}
    s_add_u32 {S.ob}, {S.oa}, {2*HXROW}
    s_add_u32 {S.otb}, {S.ota}, {2*HXROW}
    s_lshl_b32 {S.phq}, s2, 2
    s_add_u32 {S.phq}, {S.phq}, s3
    s_mul_i32 {S.phq}, {S.phq}, 10240
    s_add_u32 {S.phq}, {S.phq}, {PHQ}
    s_mul_i32 {S.kvg}, {S.j}, {8*6144}
    s_add_u32 {S.kvg}, {S.kvg}, {KVP}
    s_mul_i32 {S.kvp}, {S.i}, 6144
    s_add_u32 {S.kvp}, {S.kvp}, {S.kvg}
    s_mul_i32 {S.t2}, s3, 12288
    s_add_u32 {S.kvg}, {S.kvg}, {S.t2}
    s_min_u32 {S.t2}, s3, 2
    s_lshl_b32 {S.t2}, {S.t2}, 10
    s_add_u32 {S.kvp}, {S.kvp}, {S.t2}
    s_add_u32 {S.redb}, {S.t2}, {SCR}
    s_lshl_b32 {S.fkl}, {S.j}, 12
    s_add_u32 {S.fkl}, {S.fkl}, {FKV}
    s_lshl_b32 {S.t2}, {S.i}, 2
    s_add_u32 {S.t2}, {S.t2}, s3
    s_lshl_b32 {S.t3}, {S.t2}, 7
    s_add_u32 {S.fko}, {S.fkl}, {S.t3}
    s_mov_b32 {S.L}, {LOG2E}
    s_mov_b32 {S.nL}, {LOG2E | 0x80000000}
    s_mov_b32 {S.hi32}, 0
    s_mov_b32 {S.hi('hi32')}, -1
    s_mov_b32 {S.lo32}, -1
    s_mov_b32 {S.hi('lo32')}, 0
    """)
    mini = f"""
    s_and_b32 {S.t4}, s2, 1
    s_lshl_b32 {S.t4}, {S.t4}, 3
    s_and_b32 {S.t2}, {S.idx}, 7
    s_add_u32 {S.t4}, {S.t4}, {S.t2}
    s_lshr_b32 {S.t3}, {S.idx}, 3
    """
    setup3 = Is(mini + f"""
    s_lshl_b32 {S.bb0}, {S.t4}, 3
    s_lshl_b32 {S.t2}, s3, 1
    s_add_u32 {S.bb0}, {S.bb0}, {S.t2}
    s_mul_i32 {S.bb0}, {S.bb0}, {HXROW}
    s_add_u32 {S.bb0}, {S.bb0}, {HX + 18*1024}
    s_mul_i32 {S.t2}, {S.sp}, 41
    s_max_u32 {S.t2}, {S.t2}, 20
    s_sub_u32 {S.t2}, {S.t2}, 20
    s_lshl_b32 {S.wd2}, {S.t2}, 10
    s_add_u32 {S.bb0}, {S.bb0}, {S.wd2}
    s_add_u32 {S.bb1}, {S.bb0}, {HXROW}
    s_mul_i32 {S.wd2}, {S.t3}, 144
    s_add_u32 {S.t2}, {S.t2}, {S.wd2}
    s_mul_i32 {S.wda}, {S.t2}, 5120
    s_add_u32 {S.wda}, {S.wda}, {S.wl}
    s_add_u32 {S.wda}, {S.wda}, {WDA}
    s_lshl_b32 {S.wdb}, {S.t2}, 11
    s_add_u32 {S.wdb}, {S.wdb}, {S.wl}
    s_add_u32 {S.wd2}, {S.wdb}, {WD2}
    s_add_u32 {S.wdb}, {S.wdb}, {WDB}
    s_mul_i32 {S.wot}, {S.t3}, {18*9*1024}
    s_add_u32 {S.wot}, {S.wot}, {S.wl}
    s_add_u32 {S.wot}, {S.wot}, {WOT}
    s_lshr_b32 {S.fin}, {S.t4}, 1
    s_lshl_b32 {S.fin}, {S.fin}, 2
    s_and_b32 {S.t2}, {S.t4}, 1
    s_lshl_b32 {S.t2}, {S.t2}, 1
    s_add_u32 {S.fin}, {S.fin}, {S.t2}
    s_lshr_b32 {S.t2}, s3, 1
    s_add_u32 {S.fin}, {S.fin}, {S.t2}
    s_lshl_b32 {S.fin}, {S.fin}, 12
    s_add_u32 {S.fin}, {S.fin}, {FLG}
    s_lshl_b32 {S.t4}, {S.t4}, 2
    s_add_u32 {S.t4}, {S.t4}, {S.t3}
    s_mul_i32 {S.t3}, s3, 9216
    s_mul_i32 {S.xchw}, {S.t4}, {16*9216}
    s_add_u32 {S.xchw}, {S.xchw}, {S.t3}
    s_add_u32 {S.xchw}, {S.xchw}, {XCH}
    s_mul_i32 {S.sxc}, {S.t4}, {4*9216}
    s_add_u32 {S.sxc}, {S.sxc}, {S.t3}
    s_add_u32 {S.sxc}, {S.sxc}, {SXC}
    s_mul_i32 {S.snd}, {S.sp}, {4*9216}
    s_add_u32 {S.snd}, {S.snd}, {S.xchw}
    s_add_u32 {S.t2}, {S.sp}, 1
    s_and_b32 {S.t2}, {S.t2}, 3
    s_lshl_b32 {S.t2}, {S.t2}, 11
    s_add_u32 {S.g2}, {S.snd}, {S.t2}
    s_lshl_b32 {S.t2}, {S.sp}, 3
    s_lshl_b32 {S.mown}, 0xff, {S.t2}
    s_mov_b32 {S.hi('mown')}, 0
    s_or_b32 {S.ml3}, {S.mown}, 0xff
    s_mov_b32 {S.hi('ml3')}, 0
    s_lshr_b32 {S.t2}, {S.idx}, 2
    s_lshl_b32 {S.msnd}, 0x01010101, {S.t2}
    s_mov_b32 {S.hi('msnd')}, 0
    """)
    setup4 = Is(mini + f"""
    s_lshl_b32 {S.xo0}, {S.t4}, 3
    s_lshl_b32 {S.t2}, s3, 1
    s_add_u32 {S.xo0}, {S.xo0}, {S.t2}
    s_mul_i32 {S.xo0}, {S.xo0}, {16*1152}
    s_mul_i32 {S.t2}, {S.t3}, 288
    s_add_u32 {S.xo0}, {S.xo0}, {S.t2}
    s_add_u32 {S.xo2}, {S.xo0}, 256
    s_lshl_b32 {S.t2}, {S.sp}, 6
    s_add_u32 {S.xo0}, {S.xo0}, {S.t2}
    s_add_u32 {S.xo1}, {S.xo0}, {16*1152}
    s_add_u32 {S.xo3}, {S.xo2}, {16*1152}
    s_lshl_b32 {S.t3}, {S.sp}, 11
    s_add_u32 {S.sxo}, {S.sxc}, {S.t3}
    s_mov_b32 {S.c58}, 0x3f80
    s_mov_b32 {S.c59}, 0x3f800000
    """)
    for n, (snm, rnm) in enumerate(((None, "rc3"), ("g1a", "rc2"), ("g1b", "rc1"))):
        setup4 += Is(f"s_add_u32 {S.t2}, {S.sp}, {n+1}\ns_and_b32 {S.t2}, {S.t2}, 3")
        if snm: setup4 += Is(f"s_lshl_b32 {S.t4}, {S.t2}, 11\ns_add_u32 s{S.m[snm]}, {S.snd}, {S.t4}")
        setup4 += Is(f"s_mul_i32 {S.t2}, {S.t2}, {4*9216}\ns_add_u32 {S.t2}, {S.t2}, {S.xchw}\ns_add_u32 s{S.m[rnm]}, {S.t2}, {S.t3}")
    def dma_lin(sreg, add, page, tag):
        return Is(f"""s_add_u32 m0, {S.wl}, {page*8192}
        s_add_u32 {S.ta0}, {sreg}, {add}
        buffer_load_dwordx4 v1, s[4:7], {S.ta0} offen lds
        buffer_load_dwordx4 v1, s[4:7], {S.ta0} offen offset:1024 lds""", tag)
    def dma_sg(sg, q, pa, pb, tag):
        X = q * 64 * 9216 + sg * 128
        return Is(f"""s_add_u32 m0, {S.wsg}, {pa*8192}
        s_add_u32 {S.ta0}, {S.sgb}, {X}
        buffer_load_dwordx4 v2, s[8:11], {S.ta0} offen lds
        s_add_u32 m0, {S.wsg}, {pb*8192-64}
        s_add_u32 {S.ta1}, {S.sgb}, {X + 16*9216 - 1024}
        buffer_load_dwordx4 v2, s[8:11], {S.ta0} offen offset:64 lds
        buffer_load_dwordx4 v2, s[8:11], {S.ta1} offen offset:1088 lds
        s_add_u32 m0, {S.wsg}, {pa*8192}
        buffer_load_dwordx4 v2, s[8:11], {S.ta1} offen offset:1024 lds""", tag)
    def xloads(q):
        L = Is(f"s_add_u32 {S.tb0}, {S.xb0}, {4096*q}\ns_add_u32 {S.tb1}, {S.xb1}, {4096*q}")
        for kk in range(4 * q, 4 * q + 4):
            for tb in range(2):
                L += Is(f"buffer_load_dwordx4 {xreg(kk,tb)}, v1, s[4:7], {(S.tb0, S.tb1)[tb]} offen offset:{(kk&3)*1024}")
        return L
    nh = 21 if first else 41
    SINFO = {"A": (S.wda, 5), "O": (S.wot, 9), "B": (S.wdb, 2), "W": (S.wd2, 2)}
    segs = [("A", 0, 21), ("O", 0, 18), ("B", 0, 21), ("W", 0, 21)] if first else [("A", 0, 28), ("B", 0, 28), ("A", 28, 41), ("B", 28, 41), ("W", 0, 41)]
    K3S = 40
    k3seq = [(nm, st, p) for nm, s0, s1 in segs for st in range(s0, s1) for p in range(SINFO[nm][1])]
    k3first = {}; k3last = {}
    for n, (nm, st, p) in enumerate(k3seq):
        pg = (nm, (st * SINFO[nm][1] + p) // 8)
        k3first.setdefault(pg, K3S + n // (8 * PB)); k3last[pg] = K3S + n // (8 * PB)
    k3pages = list(k3first)
    NB = K3S + (len(k3seq) - 1) // (8 * PB) + 1
    BARS = tuple(BARS) + (36, 37, 38, 39) + tuple(range(K3S, NB))
    groups = []
    for q in range(9):
        groups.append(("Q", q, q, [q]))
        if q % 2 == 0: groups.append(("S", q // 2, q, [min(q + 1, 8)]))
    for q in range(9): groups.append(("SG0", q, 9 + q, [9 + q, 18 + q]))
    for q in range(9): groups.append(("SG1", q, 27 + q, [27 + q, 37 + q // 3]))
    for pg in k3pages: groups.append(("K3", pg, k3first[pg], [k3last[pg]]))
    page_rel = {p: -9 for p in range(NPAGE)}
    page_rel[PHPAGE] = 17
    pageof = {}; issue_at = {}
    pubbar = lambda s_: max(b for b in BARS if b <= s_)
    gi = 0
    for t in (-1,) + BARS:
        L = []
        while gi < len(groups):
            name, q, need, rels = groups[gi]
            need = pubbar(need)
            if name == "K3":
                if t < 36 or (t >= K3S - 1 and need > t + LOOK3): break
            elif need > (t + (LOOK if name[0:2] != 'SG' else LOOKSG) if t >= 0 else PRO): break
            free = [p for p in range(NPAGE) if page_rel[p] <= t - 2]
            got = []
            for r in rels:
                cand = [p for p in free if p not in got and (p < 15 or (p >= 18 and t >= 26) or t >= 39) and not (p == 0 and name.startswith("SG") and len(got) == 1)]
                if not cand: got = None; break
                cand.sort(key=lambda p: (0 if (p >= 15) else 1, p))
                got.append(cand[0])
            if got is None: break
            for p, r in zip(got, rels): page_rel[p] = r
            tag = f"st{need}"
            L.append(('NEED', need))
            if name == "Q":
                pageof[("Q", q)] = got[0]; L += dma_lin(S.qb, q * 8192, got[0], tag)
                if q % 2 == 1: L += xloads(q)
                if q == 5:
                    L += Is(f"s_add_u32 m0, {S.wl}, {PHPAGE*8192}\nbuffer_load_dwordx4 v1, s[4:7], {S.phia} offen lds\nbuffer_load_dwordx4 v1, s[4:7], {S.phia} offen offset:1024 lds", "st5")
            elif name == "S":
                pageof[("S", q)] = got[0]; L += dma_lin(S.sb, q * 8192, got[0], tag) + xloads(2 * q)
                if q == 4:
                    L += Is(f"s_mul_i32 {S.ta1}, s3, 9216")
                    for n in range(9): L += Is(f"s_add_u32 m0, {S.ta1}, {WDB_L + n*1024}\nbuffer_load_dwordx4 v{T(9)+n}, s[12:15], 0 offen lds", "st8")
            elif name == "K3":
                pageof[("K3", q)] = got[0]; L += dma_lin(SINFO[q[0]][0], q[1] * 8192, got[0], tag)
            else:
                sg = int(name[2]); pageof[("A", sg, q)] = got[0]; pageof[("B", sg, q)] = got[1]
                L += dma_sg(sg, q, got[0], got[1], tag)
            assert need > t, (name, q, need, t)
            L.append(('BY', need))
            gi += 1
        issue_at[t] = L
    assert gi == len(groups)
    k.alloc = {t: len([x for x in L if isinstance(x, Ins) and x.kind in VMK]) for t, L in issue_at.items()}
    k([x for x in issue_at[-1] if isinstance(x, Ins)])
    frags = []
    def add(t, page, kk, seg, tups):
        frags.append(dict(t=t, a=page * 8192 + (kk & 3) * 1024, seg=seg, big=True, d=[vr(T(x), 16) for x in tups], b=[xreg(kk, 0), xreg(kk, 1)], z=(kk == 0)))
    for kk in range(36):
        q = kk >> 2
        add(q, pageof[("Q", q)], kk, 0, (0, 2)); add(q, pageof[("Q", q)], kk, 1, (1, 3))
        add(q, pageof[("S", q >> 1)], kk, q & 1, (4, 5))
    M2 = 2 * len(frags)
    for kk in range(36):
        q = kk >> 2
        add(9 + q, pageof[("A", 0, q)], kk, 0, (6, 7)); add(9 + q, pageof[("A", 0, q)], kk, 1, (8, 9))
    M3 = 2 * len(frags)
    for kk in range(36):
        q = kk >> 2
        add(18 + q, pageof[("B", 0, q)], kk, 0, (0, 2)); add(18 + q, pageof[("B", 0, q)], kk, 1, (4, 5))
    M4 = 2 * len(frags)
    for kk in range(36):
        q = kk >> 2
        add(27 + q, pageof[("A", 1, q)], kk, 0, (6, 7)); add(27 + q, pageof[("A", 1, q)], kk, 1, (8, 9))
    M5a = 2 * len(frags)
    for kk in range(36): add(36, pageof[("B", 1, kk >> 2)], kk, 0, (0, 2))
    M5b = 2 * len(frags)
    for kk in range(36): add(37 + kk // 12, pageof[("B", 1, kk >> 2)], kk, 1, (4, 5))
    MK = 2 * len(frags)
    ovf = q4(16, 8) + (q4(T(5), 4) + q4(E0 + 12, 2) if first else q4(T(0), 4) + q4(T(2), 4) + q4(T(9), 2))
    def breg(step, tb):
        n = step * 2 + tb
        return f"a[{4*n}:{4*n+3}]" if n < 64 else vr(ovf[n - 64], 4)
    ACC = {"A": [T(6), T(6) + 8, T(7), T(7) + 8, T(8)], "O": [T(0), T(0) + 8, T(2), T(2) + 8, T(9), T(9) + 8, T(1), T(1) + 8, T(8) + 8],
           "B": [T(3), T(3) + 8], "W": [T(4), T(4) + 8]}
    Mst = {}; Men = {}; firstuse = {}
    for n, (nm, st, p) in enumerate(k3seq):
        Mst.setdefault(nm, 2 * len(frags)); Men[nm] = 2 * len(frags) + 2
        bs = st + (21 if nm == "O" else 0)
        firstuse.setdefault(bs, 2 * len(frags))
        f = st * SINFO[nm][1] + p; a = ACC[nm][p]
        frags.append(dict(t=K3S + n // (8 * PB), a=pageof[("K3", (nm, f // 8))] * 8192 + (f % 8) * 1024, big=False, d=[vr(a, 4), vr(a + 4, 4)], b=[breg(bs, 0), breg(bs, 1)], z=(st == 0)))
    NF = len(frags); MEND = 2 * NF
    def rd(n):
        f = frags[n]; r = RING0 + 4 * (n % NRING)
        if f["big"]:
            return [I(f"ds_read_b64_tr_b16 v[{r+2*h}:{r+2*h+1}], v{5 + 2*((f['a']+h*256) >> 16) + f['seg']} offset:{(f['a']+h*256) & 0xffff}", f"fr{n}") for h in range(2)]
        return [I(f"ds_read_b128 {vr(r,4)}, v{(1, 11, 12)[f['a'] >> 16]} offset:{f['a'] & 0xffff}", f"fr{n}")]
    main = []; pre = {}; post = {}
    for n, f in enumerate(frags):
        r = RING0 + 4 * (n % NRING)
        if n % 2 == 0 and n + 1 < NF: pre[2 * n] = Is(f"@waitlgkm fr{n+1}")
        op = "v_mfma_f32_32x32x16_bf16" if f["big"] else "v_mfma_f32_16x16x32_bf16"
        for tb in range(2):
            main.append(I(f"{op} {f['d'][tb]}, {vr(r,4)}, {f['b'][tb]}, {'0' if f['z'] else f['d'][tb]}"))
    bar_idx = {0: -1}
    k(stamp())
    k("@waitvm st0\ns_barrier")
    for n in range(DEPTH): k(rd(n))
    cur = 0
    for n in range(NF - DEPTH):
        m = n + DEPTH; t = frags[m]["t"]
        p0 = post.setdefault(2 * n, []); p1 = post.setdefault(2 * n + 1, [])
        if t != cur and t in BARS:
            cur = t; bar_idx[t] = 2 * n
            p0 += Is(f"@waitvm st{t}\ns_barrier")
        r = rd(m)
        p0.append(r[0])
        if len(r) > 1: p1.append(r[1])
    ioa = deque()
    for t in BARS:
        if issue_at[t]:
            ioa.append(After(bar_idx[t], True))
            if t == 36:
                ioa.append(Group(Is(f"s_mov_b32 {S.mwd}, -1\ns_mov_b32 {S.hi('mwd')}, {(1 << ((39 if first else 41) - 32)) - 1}")))
                ioa.append(check(S.ta1, E0 + 16, 2, S.p('mwd'), "Lwd", S.ta0))
            for x in issue_at[t]:
                if isinstance(x, tuple): ioa.append(By(bar_idx[x[1]]) if x[0] == 'BY' else Need(bar_idx[x[1]]))
                else: ioa.append(x)
    pre.setdefault(M4, []).insert(0, I("L_split:"))
    bg = deque()
    oq = [0]
    def nq():
        oq[0] ^= 1; return E0 + 4 * oq[0]
    bg.extend(setup); bg.append(By(bar_idx[2])); bg.extend(setup2); bg.append(After(bar_idx[8], True)); bg.extend(wdt); bg.append(By(M2)); bg.extend(setup3)
    bg.extend(Is(f"v_mov_b32 v{E0+12}, -1\nv_mov_b32 v{E0+13}, -1\nv_mov_b32 v{E0+14}, -1\nv_mov_b32 v{E0+15}, -1"))
    for n in range(2): bg.append(I(f"buffer_store_dwordx4 {vr(E0+12,4)}, v1, s[4:7], {S.g2} offen offset:{n*1024} sc1", "h1"))
    bg.append(After(M2 - 1))
    for tb in range(2):
        a, b = T(2 * tb), T(2 * tb + 1)
        for i in range(8): bg.append(I(f"v_cvt_pk_bf16_f32 v{a+i}, v{a+2*i}, v{a+2*i+1}"))
        for i in range(8): bg.append(I(f"v_cvt_pk_bf16_f32 v{a+8+i}, v{b+2*i}, v{b+2*i+1}"))
    for tb in range(2): bg.extend(h_unit(T(4 + tb), 0, tb, 0, nq(), "h1"))
    if 'ts' in TOUCH:
        bg.extend(Is(f"""s_and_b32 {S.t2}, {S.i}, 3
        s_lshl_b32 {S.t2}, {S.t2}, 1
        s_and_b32 {S.t3}, s3, 1
        s_add_u32 {S.t2}, {S.t2}, {S.t3}
        s_mul_i32 {S.t2}, {S.t2}, {72*9216}
        s_lshl_b32 {S.t3}, {S.j}, 8
        s_add_u32 {S.t2}, {S.t2}, {S.t3}
        s_add_u32 {S.t2}, {S.t2}, 128
        v_mul_u32_u24 v{T(3)+15}, 2304, v0
        buffer_load_dword v{T(3)+14}, v{T(3)+15}, s[8:11], {S.t2} offen sc1
        s_add_u32 {S.t2}, {S.t2}, {8*9216}
        buffer_load_dword v{T(3)+15}, v{T(3)+15}, s[8:11], {S.t2} offen sc1"""))
    bg.extend(setflag(S.fo, 2, 'wd', 15))
    bg.append(I(f"v_mov_b32 v15, 0x3f80"))
    bg.append(After(bar_idx[11], True))
    bg.append(I(f"v_add_u32 v14, {PHPAGE*8192}, v1"))
    for tb in range(2):
        Q = T(2 * tb)
        O = (T(4), T(5)) if tb == 0 else (T(1), T(3))
        for f in range(6): bg.append(I(f"ds_read_b128 {vr(E0+4*f,4)}, v14 offset:{f*1024}"))
        bg.append(I(f"v_lshrrev_b32 v{O[1]}, 7, v0"))
        bg.append(I(f"v_lshl_add_u32 v{O[1]}, v{O[1]}, 3, v11"))
        if tb == 1: bg.append(I(f"v_add_u32 v{O[1]}, 5120, v{O[1]}"))
        bg.append(I(f"ds_write2_b64 v{O[1]}, {vr(Q+12,2)}, {vr(Q+14,2)} offset0:12 offset1:14"))
        bg.append(Group(Is(f"s_mov_b64 exec, {S.p('hi32')}\nds_write_b32 v11, v{Q+8} offset:{tb*5120+128}\nds_write_b32 v11, v15 offset:{tb*5120+132}\ns_mov_b64 exec, -1")))
        bg.append(Skip(2))
        for ob in range(2):
            d = vr(O[ob], 16)
            for hb in range(3):
                bg.append(I(f"v_mfma_f32_32x32x16_bf16 {d}, {vr(E0+4*(3*ob+hb),4)}, {vr(Q+4*hb,4)}, {'0' if hb == 0 else d}"))
        if tb == 1: bg.append(By(M3))
        bg.append(Skip(2))
        P = [O[0] + i for i in range(16)] + [O[1], O[1] + 1]
        bg.extend(softmax(P, O[1] + 2))
        for m in range(5):
            n = tb * 5 + m
            if n % 4 == 0: bg.append(I(f"s_add_u32 {S.t2}, {S.phq}, {n*1024}"))
            bg.append(I(f"buffer_store_dwordx4 {vr(E0+4*m,4)}, v1, s[4:7], {S.t2} offen offset:{(n%4)*1024}", "stash"))
        g = Is(f"s_mov_b64 exec, {S.p('hi32')}")
        for m in range(4): g += Is(f"ds_write_b128 v11, {vr(E0+4*m,4)} offset:{tb*5120+16*m}")
        g += Is(f"ds_write_b64 v11, {vr(E0+16,2)} offset:{tb*5120+64}\ns_mov_b64 exec, -1")
        bg.append(Group(g))
    KA = T(1); KB_ = E0 + 12
    accr = [T(3), T(3) + 4, T(3) + 8, T(3) + 12, T(1) + 12, E0 + 20]
    for r in range(2):
        for seg in (0, 3, 4, 1, 2):
            d = KA + 4 * seg if seg < 3 else KB_ + 4 * (seg - 3)
            for h in range(2):
                bg.append(I(f"ds_read_b64_tr_b16 {vr(d+2*h,2)}, v12 offset:{r*5120 + seg*32 + h*2560}"))
        if r == 0:
            bg.append(After(M3 + 1)); bg.extend(h_unit(T(6), 1, 0, 0, nq(), "h1")[:26])
        else: bg.extend(h_unit(T(6), 1, 0, 0, E0 + 4 * oq[0], "h1")[26:])
        for rb in range(3):
            for cb in range(2):
                d = vr(accr[cb * 3 + rb], 4)
                bg.append(I(f"v_mfma_f32_16x16x32_bf16 {d}, {vr(KA+4*rb,4)}, {vr(KB_+4*cb,4)}, {'0' if r == 0 else d}"))
    bg.append(I(f"v_add_u32 v14, {S.scrw}, v1"))
    bg.append(Skip(1))
    for sl in range(6): bg.append(I(f"ds_write_b128 v14, {vr(accr[sl],4)} offset:{sl*1024}", "red"))
    bg.extend(h_unit(T(7), 1, 1, 0, nq(), "h1"))
    bg.append(I(f"v_add_u32 v14, {S.redb}, v1"))
    bg.append(Group(Is("@waitlgkm red\ns_barrier")))
    RR = (T(1), T(3))
    for cb in range(2):
        for src in range(4): bg.append(I(f"ds_read_b128 {vr(RR[cb]+4*src,4)}, v14 offset:{src*10240+cb*3072}", "red2"))
    bg.append(Skip(3))
    for cb in range(2):
        b = RR[cb]
        for i in range(4): bg.extend(Is(f"v_add_f32 v{b+i}, v{b+i}, v{b+4+i}\nv_add_f32 v{b+8+i}, v{b+8+i}, v{b+12+i}"))
        for i in range(4): bg.append(I(f"v_add_f32 v{b+i}, v{b+i}, v{b+8+i}"))
        bg.append(I(f"buffer_store_dwordx4 {vr(b,4)}, v1, s[4:7], {S.kvp} offen offset:{cb*3072} sc1", "kvp"))
    bg.append(By(bar_idx[26]))
    for tb in range(2): bg.extend(h_unit(T(8 + tb), 1, tb, 512, nq(), "h1"))
    bg.append(By(M4))
    bg.extend(Is(f"v_mov_b32 v{E0+12}, -1\nv_mov_b32 v{E0+13}, -1\nv_mov_b32 v{E0+14}, -1\nv_mov_b32 v{E0+15}, -1"))
    bg.extend(setflag(S.fko, 1, "kvp", 15))
    bg.append(After(M4 + 1))
    if first:
        for b in range(9):
            if b % 4 == 0: bg.append(I(f"s_add_u32 {S.t2}, {S.sxc}, {b*1024}"))
            bg.append(I(f"buffer_store_dwordx4 {vr(E0+12,4)}, v1, s[4:7], {S.t2} offen offset:{(b%4)*1024} sc1", "h2"))
    bg.extend(h_unit(T(4), 2, 0, 512, nq(), "h2"))
    bg.extend(Is(f"v_add_u32 v11, 0x10000, v1\nv_add_u32 v12, 0x20000, v1"))
    bg.append(After(M4 + 24))
    bg.extend(setflag(S.fo, 3, "h1", 15))
    bg.append(poll(S.fkl, 15, S.p('lo32')))
    bg.extend(h_unit(T(5), 2, 1, 512, nq(), "h2"))
    bg.append(After(M4 + 50))
    bg.append(check(S.fkl, 15, 1, S.p("lo32"), "Lkv", S.t2))
    SS = q4(T(1), 4) + [T(3)]
    BUF = [q4(T(4), 4) + [T(3) + 4], q4(T(5), 4) + [T(3) + 8]]
    gl = []
    for p, dst in enumerate((SS, BUF[0])):
        for m in range(5):
            g_ = Is(f"s_add_u32 {S.kvg}, {S.kvg}, 6144") if (p and m == 0) else []
            gl.append(g_ + Is(f"buffer_load_dwordx4 {vr(dst[m],4)}, v13, s[4:7], {S.kvg} offen offset:{(m>>1)*1024+(m&1)*512} sc1"))
    hu = h_unit(T(0), 2, 0, 0, nq(), "h2") + h_unit(T(2), 2, 1, 0, nq(), "h2")
    for n, g_ in enumerate(gl):
        bg.extend(g_); bg.extend(hu[n * 8:(n + 1) * 8])
    bg.extend(hu[80:])
    bg.extend(htouch(1))
    bg.extend(Is(f"s_mul_i32 {S.t2}, s3, 5120\ns_add_u32 {S.t2}, {S.t2}, {SCR}\nv_add_u32 v14, {S.t2}, v1"))
    bg.append(By(M5a))
    for m in range(5):
        for i in range(4): bg.append(I(f"v_add_f32 v{SS[m]+i}, v{SS[m]+i}, v{BUF[0][m]+i}"))
        bg.append(I(f"ds_write_b128 v14, {vr(SS[m],4)} offset:{m*1024}", "g2"))
    bg.append(I(f"v_add_u32 v14, {SCR}, v1"))
    bg.append(Skip(2))
    bg.append(Group(Is("@waitlgkm g2\ns_barrier")))
    for w, dst in enumerate((SS, BUF[0], BUF[1])):
        for m in range(5): bg.append(I(f"ds_read_b128 {vr(dst[m],4)}, v14 offset:{w*5120+m*1024}"))
    bg.append(Skip(2))
    for m in range(5):
        for i in range(4): bg.append(I(f"v_add_f32 v{SS[m]+i}, v{SS[m]+i}, v{BUF[0][m]+i}"))
        bg.append(I(f"ds_read_b128 {vr(BUF[0][m],4)}, v14 offset:{3*5120+m*1024}"))
    for m in range(5):
        for i in range(4): bg.append(I(f"v_add_f32 v{SS[m]+i}, v{SS[m]+i}, v{BUF[1][m]+i}"))
    for m in range(5):
        for i in range(4): bg.append(I(f"v_add_f32 v{SS[m]+i}, v{SS[m]+i}, v{BUF[0][m]+i}"))
    PH = [q4(T(4), 4) + [T(3) + 8], q4(T(5), 4) + [T(3) + 4]]
    for tb in range(2):
        for m in range(5):
            n = tb * 5 + m
            if n % 4 == 0: bg.append(I(f"s_add_u32 {S.t2}, {S.phq}, {n*1024}"))
            bg.append(I(f"buffer_load_dwordx4 {vr(PH[tb][m],4)}, v1, s[4:7], {S.t2} offen offset:{(n%4)*1024}"))
    bg.extend(setflag(S.fo, 4, "h2", 15))
    bg.extend(htouch(2))
    bg.append(By(bar_idx[36]))
    for m in range(5):
        s_ = SS[m]
        bg.extend(Is(f"v_cvt_pk_bf16_f32 v{s_}, v{s_}, v{s_+1}\nv_cvt_pk_bf16_f32 v{s_+1}, v{s_+2}, v{s_+3}\nv_mov_b32 v{s_+2}, 0\nv_mov_b32 v{s_+3}, 0"))
    for m in range(5):
        s_ = SS[m]
        bg.extend(Is(f"v_permlane32_swap_b32 v{s_}, v{s_+2}\nv_permlane32_swap_b32 v{s_+1}, v{s_+3}"))
    bg.extend(Is(f"v_mov_b32 v{SS[4]+2}, 0\nv_mov_b32 v{SS[4]+3}, 0"))
    bg.append(After(M5a + 1))
    bg.extend(h_unit(T(6), 3, 0, 0, nq(), "h3"))
    bg.extend(h_unit(T(7), 3, 1, 0, nq(), "h3"))
    OC = [T(6), T(7)]
    for tb in range(2):
        d = vr(OC[tb], 16)
        for m in range(5):
            bg.append(I(f"v_mfma_f32_32x32x16_bf16 {d}, {vr(SS[m],4)}, {vr(PH[tb][m],4)}, {'0' if m == 0 else d}"))
    bg.append(By(M5b))
    bg.extend(h_unit(T(8), 3, 0, 512, nq(), "h3"))
    for tb in range(2):
        c = OC[tb]
        bg.extend(Is(f"v_add_f32 v{c+10}, 0x358637bd, v{c+10}\nv_rcp_f32 v{c+10}, v{c+10}\nv_nop"))
        for i in range(10): bg.append(I(f"v_mul_f32 v{c+i}, v{c+i}, v{c+10}"))
        for i in range(5): bg.append(I(f"v_cvt_pk_bf16_f32 v{c+12+i if i < 4 else c+11}, v{c+2*i}, v{c+2*i+1}"))
        bg.append(I(f"buffer_store_dwordx4 {vr(c+12,4)}, v3, s[4:7], {(S.oa,S.ob)[tb]} offen sc1", "h3"))
        bg.append(I(f"buffer_store_dword v{c+11}, v4, s[4:7], {(S.ota,S.otb)[tb]} offen sc1", "h3"))
    bg.extend(h_unit(T(9), 3, 1, 512, nq(), "h3"))
    bg.append(After(M5b + 1))
    bg.extend(h_unit(T(0), 4, 0, 0, nq(), "h4"))
    bg.extend(h_unit(T(2), 4, 1, 0, nq(), "h4"))
    bg.append(After(MK - 8))
    bg.extend(setflag(S.fo, 5, "h3", 15))
    bg.extend(htouch(3))
    bg.append(By(MK))
    bg.append(After(MK + 1))
    bg.extend(h_unit(T(4), 4, 0, 512, nq(), "h4"))
    bg.extend(h_unit(T(5), 4, 1, 512, nq(), "h4"))
    bg.append(By(MK + TAIL))
    bg.append(After(MK + TAIL + ACK))
    bg.extend(htouch(4)[:-1])
    bg.extend(setflag(S.fo, 6, "h4", 15))
    bg.extend(htouch(4)[-1:])
    bg.append(By(MK + TAIL + ACK + 4))
    bg.extend(setup4)
    bg.extend(Is(f"""s_load_dwordx2 s[8:9], s[0:1], 0
    s_load_dwordx2 s[12:13], s[0:1], 64
    v_lshrrev_b32 v13, 2, v0
    v_and_b32 v2, 15, v13
    v_mul_u32_u24 v2, 1152, v2
    v_lshrrev_b32 v13, 4, v13
    v_lshl_add_u32 v2, v13, 3, v2
    s_cmp_eq_u32 s3, {S.sp}"""))
    bg.pop()
    bg.append(Group(Is(f"s_cmp_eq_u32 s3, {S.sp}\ns_cselect_b32 {S.t2}, 0, {OOB}\nv_add_u32 v4, {S.t2}, v1")))
    bg.append(Group(Is(f"s_waitcnt lgkmcnt(0)\ns_mov_b32 s10, {2048*1152}\ns_mov_b32 s11, 0x20000\ns_mov_b32 s14, {2048*1152}\ns_mov_b32 s15, 0x20000")))
    XR = E0
    bg.append(After(MK + XAT))
    for b in range(3):
        for tb in range(2):
            bg.append(I(f"buffer_load_dwordx2 {vr(XR+4*b+2*tb,2)}, v2, s[8:11], {((S.xo0,S.xo1),(S.xo2,S.xo3))[b//2][tb]} offen offset:{32*b if b < 2 else 0}"))
    def send(acc, soff, off, tag):
        L = []
        for i in range(4): L += Is(f"v_cvt_pk_bf16_f32 v{acc+i}, v{acc+2*i}, v{acc+2*i+1}")
        L += Is(f"buffer_store_dwordx4 {vr(acc,4)}, v1, s[4:7], {soff} offen offset:{off} sc1", tag)
        return L
    bg.append(After(Men["A"] + 1))
    for p in range(4): bg.extend(send(ACC["A"][p], (S.g1a, S.g1b)[p >> 1], (p & 1) * 1024, "s1"))
    bg.append(I(f"s_add_u32 {S.t2}, {S.snd}, 8192"))
    bg.extend(send(ACC["A"][4], S.t2, 0, "s1"))
    bg.append(Skip(SACK))
    bg.extend(setflag(S.fo, 7, "s1", 15))
    if first:
        bg.append(After(Men["O"] + 1))
        for b in range(9):
            if b % 4 == 0: bg.append(I(f"s_add_u32 {S.t2}, {S.sxc}, {b*1024}"))
            bg.extend(send(ACC["O"][b], S.t2, (b % 4) * 1024, "s2"))
    bg.append(After(Mst["W"] + 1))
    for p in range(2): bg.extend(send(ACC["B"][p], S.g2, p * 1024, "s2"))
    bg.append(After(MEND - PSN))
    bg.append(poll(S.fol, 15, S.p('msnd')))
    bg.append(Skip(36))
    bg.append(check(S.fol, 15, 7, S.p('msnd'), "Lsn", S.t2))
    RQ = q4(T(6), 12) + [T(1)]
    PQ = lambda n, b: RQ[(0, 5, 7)[n] + b]
    SQ = lambda b: RQ[2 + b]
    B8 = RQ[9:13] + [RQ[4]]
    for n in (1, 2):
        for b in range(2): bg.append(I(f"buffer_load_dwordx4 {vr(PQ(n,b),4)}, v1, s[4:7], {(S.rc1,S.rc2,S.rc3)[n]} offen offset:{b*1024} sc1"))
    for n in range(4): bg.extend(Is(f"s_add_u32 {S.t2}, {S.xchw}, {n*4*9216 + 8192}\nbuffer_load_dwordx4 {vr(B8[n],4)}, v4, s[4:7], {S.t2} offen sc1"))
    late = Is("\n".join(f"buffer_load_dwordx4 {vr(PQ(0,b),4)}, v1, s[4:7], {S.rc1} offen offset:{b*1024} sc1" for b in range(2)))
    late += Is("\n".join(f"buffer_load_dwordx4 {vr(SQ(b),4)}, v1, s[4:7], {S.sxo} offen offset:{b*1024} sc1" for b in range(2)))
    late += Is(f"s_add_u32 {S.t2}, {S.sxc}, 8192\nbuffer_load_dwordx4 {vr(B8[4],4)}, v4, s[4:7], {S.t2} offen sc1")
    bg.append(After(MEND - LATE))
    bg.extend(late)
    iob = deque()
    iob.append(After(bar_idx[32] + 20, True))
    iob.append(Group(Is(f"s_mov_b32 {S.mwd}, -1\ns_mov_b32 {S.hi('mwd')}, {(1 << ((39 if first else 41) - 32)) - 1}")))
    pw_ = Is(polltxt(S.ta1, E0 + 16, S.p('mwd')))
    iob.extend(pw_[:-3]); iob.append(Group(pw_[-3:])); iob.append(By(bar_idx[36]))
    if 'tw' in TOUCH:
        TW = [(S.wda, 6656, 0, TW0), (S.wdb, 2688, 1, TW1)] + ([(S.wot, 6656, 0, TW2)] if first else [])
        for base, stride, two, at in TW:
            iob.append(After(at))
            iob.extend(Is(f"""s_and_b32 {S.tb0}, {S.idx}, 7
            s_lshl_b32 {S.tb0}, {S.tb0}, 2
            s_add_u32 {S.tb0}, {S.tb0}, s3
            s_mul_i32 {S.tb0}, {S.tb0}, {stride}
            s_sub_u32 {S.tb0}, {S.tb0}, {S.wl}
            s_add_u32 {S.tb0}, {S.tb0}, {base}
            v_lshlrev_b32 v{E0+18}, 5, v0"""))
            if two: iob.extend(Is(f"v_lshrrev_b32 v{E0+17}, 7, v0\nv_mul_u32_u24 v{E0+17}, {(WD2 - WDB - 4096) // 128}, v{E0+17}\nv_lshl_add_u32 v{E0+18}, v{E0+17}, 7, v{E0+18}"))
            iob.append(I(f"buffer_load_dword v{E0+18}, v{E0+18}, s[4:7], {S.tb0} offen"))
    PVS = {1: E0 + 20, 2: E0 + 21, 3: E0 + 22, 4: E0 + 23}
    PV = E0 + 21
    gates = {0: (1, S.p('mown'), "L1", M5a - 40, M5b - 4), 12: (2, S.p('mown'), "L2", M5a + 44, M5b + 24),
             20: (3, S.p("lo32") if first else S.p('mown'), "L3", MK + P3, MK + C3)}
    if not first: gates[28] = (4, S.p('ml3'), "L4", MK + P4, MK + C4)
    for g_ in gates.values(): post.setdefault(g_[3], []).extend(poll(S.fin, PVS[g_[0]], g_[1]).ins)
    nsteps = 39 if first else 41
    for st in range(nsteps):
        iob.append(Need(firstuse[st] - 40))
        if st in gates:
            lv, mk, nm, pa, ca = gates[st]
            iob.append(After(ca, True)); iob.append(check(S.fin, PVS[lv], lv + 2, mk, nm, S.tb0))
        if firstuse[st] - LEADB > MK: iob.append(After(firstuse[st] - LEADB))
        if st < 32: iob.append(After(M5b + 2 * st + 1, True))
        elif st == 32: iob.append(After(MK + TAIL, True))
        off = st * 1024 if st < 21 or not first else (st - 21 - 18) * 1024
        if st % 4 == 0 or (first and st == 21) or st in (12, 20, 28):
            base = off; iob.extend(Is(f"s_add_u32 {S.tb0}, {S.bb0}, {off & 0xffffffff}\ns_add_u32 {S.tb1}, {S.bb1}, {off & 0xffffffff}"))
        if first and st > 21 and (st - 21) % 4 == 0: base = off; iob.extend(Is(f"s_add_u32 {S.tb0}, {S.bb0}, {off & 0xffffffff}\ns_add_u32 {S.tb1}, {S.bb1}, {off & 0xffffffff}"))
        assert 0 <= off - base < 4096
        for tb in range(2): iob.append(I(f"buffer_load_dwordx4 {breg(st,tb)}, v1, s[4:7], {(S.tb0,S.tb1)[tb]} offen offset:{off-base}{BSC}"))
        iob.append(By(firstuse[st]))
    if stamps:
        for d in stset:
            idx = eval(d) if isinstance(d, str) else bar_idx[d]
            post.setdefault(idx, []).extend(stamp())
    if trace:
        for n, idx in enumerate(range(tstart, MEND - 8, trace)):
            if n > 63: break
            post.setdefault(idx, []).append(I(f"{STAMPOP} s[98:99]"))
            post.setdefault(idx + min(5, trace - 1), []).append(I(f"v_writelane_b32 v68, s98, {n}"))
    out = []
    boost = {id(m) for m in main[MK:MK + TAIL]}
    def vg(i):
        if i < M2: return VG1
        if i < M5a: return VG
        if i < MK: return VG5
        return VG3
    weave(out, main, pre, post, [ioa, iob, bg], lambda m: (6, 6, 40) if m.passes == 8 else ((4, 5, 32) if id(m) in boost else (2, 2, 16)), vmgap=vg,
          reserve=lambda i: 1 if i % 4 == 3 else 0, nio=2, bgvm=lambda i: VGS if Men['A'] < i < MEND - PSN - 5 else 64)
    k.log = list(weave.log); k.marks = dict(M2=M2, M3=M3, M4=M4, M5a=M5a, M5b=M5b, MK=MK, MEND=MEND, **Mst)
    txt = [x.text for x in out]
    sets = [n for n, t in enumerate(txt) if t.startswith("buffer_store_dword v15, off")]
    chk = {nm: next((n for n, t in enumerate(txt) if t.startswith(f"s_cbranch_scc1 {nm}_")), 1 << 30) for nm in ("Lwd", "Lkv", "L1", "L2", "L3", "L4", "Lsn")}
    assert all(a_ < b_ for a_, b_ in zip(sets, chk.values())), (sets, chk)
    k(out)
    k(stamp())
    fl = 'f' if first else 'o'
    k(f"s_mov_b32 {S.t3}, 100000\nLchk_{fl}:\ns_waitcnt vmcnt(0)")
    r = RQ[0]
    k(f"v_max3_u32 v14, v{r}, v{r+1}, v{r+2}\nv_max3_u32 v15, v{r+3}, v{r+4}, v{r+5}")
    for i in range(6, 18, 4): k(f"v_max3_u32 v14, v14, v{r+i}, v{r+i+1}\nv_max3_u32 v15, v15, v{r+i+2}, v{r+i+3}")
    k(f"v_max3_u32 v14, v14, v{r+18}, v{r+19}\nv_max_u32 v14, v14, v15\nv_cmp_eq_u32 vcc, -1, v14\ns_nop 4\ns_cbranch_vccz Lok_{fl}")
    k(f"s_sub_u32 {S.t3}, {S.t3}, 1\ns_cmp_eq_u32 {S.t3}, 0\ns_cbranch_scc1 Lok_{fl}")
    if stamps: k("s_add_u32 s101, s101, 1")
    k([I(x.text) for x in late]); k(f"s_branch Lchk_{fl}\nLok_{fl}:\n@reset")
    k(stamp())
    def fin_unit(acc, parts, sreg, xreg_, soff, off, t):
        L = []
        for i in range(4):
            sel = S.c58 if i % 2 == 0 else S.c59
            for n, p in enumerate(parts):
                d = acc + i if acc is not None else t + 8 + i
                c = f"v{d}" if (acc is not None or n > 0) else "0"
                L += Is(f"v_dot2_f32_bf16 v{d}, v{p + i//2}, {sel}, {c}")
        f = acc if acc is not None else t + 8
        for i in range(4): L += Is(f"v_mul_f32 v{t+i}, {S.nL}, v{f+i}")
        for i in range(4): L += Is(f"v_exp_f32 v{t+i}, v{t+i}")
        for i in range(4): L += Is(f"v_lshlrev_b32 v{t+4+i}, 16, v{sreg+i//2}" if i % 2 == 0 else f"v_and_b32 v{t+4+i}, 0xffff0000, v{sreg+i//2}")
        for i in range(4): L += Is(f"v_add_f32 v{t+i}, 1.0, v{t+i}")
        for i in range(4): L += Is(f"v_rcp_f32 v{t+i}, v{t+i}")
        for i in range(4): L += Is(f"v_mul_f32 v{f+i}, v{f+i}, v{t+4+i}")
        for i in range(4): L += Is(f"v_lshlrev_b32 v{t+4+i}, 16, v{xreg_+i//2}" if i % 2 == 0 else f"v_and_b32 v{t+4+i}, 0xffff0000, v{xreg_+i//2}")
        for i in range(4): L += Is(f"v_fma_f32 v{f+i}, v{f+i}, v{t+i}, v{t+4+i}")
        L += Is(f"v_cvt_pk_bf16_f32 v{t+12}, v{f}, v{f+1}\nv_cvt_pk_bf16_f32 v{t+13}, v{f+2}, v{f+3}")
        L += Is(f"buffer_store_dwordx2 {vr(t+12,2)}, v2, s[12:15], {soff} offen offset:{off}")
        return L
    TT = [T(9), T(0), T(2), T(5)]
    for b in range(2):
        for tb in range(2):
            k(fin_unit(ACC["W"][b] + 4 * tb, [PQ(n, b) + 2 * tb for n in range(3)], SQ(b) + 2 * tb, XR + 4 * b + 2 * tb, (S.xo0, S.xo1)[tb], 32 * b, TT[2 * b + tb]))
    k(f"s_cmp_eq_u32 s3, {S.sp}\ns_cbranch_scc0 Ldone_{fl}")
    for tb in range(2):
        k(fin_unit(None, [B8[n] + 2 * tb for n in range(4)], B8[4] + 2 * tb, XR + 8 + 2 * tb, (S.xo2, S.xo3)[tb], 0, 16 + 16 * tb))
    k(f"Ldone_{fl}:")
    if trace:
        k(f"s_lshl_b32 {S.t2}, s2, 2\ns_add_u32 {S.t2}, {S.t2}, s3\ns_lshl_b32 {S.t2}, {S.t2}, 8\ns_add_u32 {S.t2}, {S.t2}, {STAMP + (2<<20)}\nbuffer_store_dword v68, v0, s[4:7], {S.t2} offen")
    if stamps:
        k("s_waitcnt vmcnt(0)")
        k(stamp())
        k(f"s_waitcnt lgkmcnt(0)\ns_lshl_b32 {S.t2}, s2, 2\ns_add_u32 {S.t2}, {S.t2}, s3\ns_lshl_b32 {S.t2}, {S.t2}, 7\ns_add_u32 {S.t2}, {S.t2}, {STAMP + (1<<20)}")
        for i in range(nst[0]):
            k(f"v_mov_b32 v16, s{ST0+2*i}\nv_mov_b32 v17, s{ST0+2*i+1}\nbuffer_store_dwordx2 v[16:17], off, s[4:7], {S.t2} offset:{8*i}\ns_nop 1")
        k(f"v_mov_b32 v16, s100\nv_mov_b32 v17, s101\nbuffer_store_dwordx2 v[16:17], off, s[4:7], {S.t2} offset:120")
    k("s_endpgm")
    for lab, line, vreg, body, treg in spins:
        gi_ = ('Lkv', 'L1', 'L2', 'L3', 'L4', 'Lsn', 'Lwd').index(lab.split('_')[0]) % 6
        if first and lab[0] == 'K': continue
        k(f"""{lab}_spin:
        @reset
        s_mov_b32 {S.t4}, 200000
        {lab}_spin2:
        s_sleep 1
        {'s_add_u32 s100, s100, %d' % (1 << (5 * gi_)) if stamps else ''}
        {polltxt(line, vreg, treg)}
        s_waitcnt vmcnt(0)
        {body}
        s_cbranch_scc0 {lab}_back
        s_sub_u32 {S.t4}, {S.t4}, 1
        s_cmp_eq_u32 {S.t4}, 0
        s_cbranch_scc0 {lab}_spin2
        s_branch {lab}_back""")
    k.nstamps = nst[0]; k.S = S
    return k

class Fused:
    def __init__(self, **kw):
        a = build(False, **kw); b = build(True, **kw)
        fa = a.finalize(); fb = b.finalize()
        ia = next(n for n, x in enumerate(fa) if x.text == "L_split:"); ib = next(n for n, x in enumerate(fb) if x.text == "L_split:")
        assert ia == ib and [x.text for x in fa[:ia]] == [x.text for x in fb[:ib]], "prefix differs"
        S = a.S
        self.final = fa[:ia] + Is(f"s_cmp_eq_u32 {S.sp}, 0\ns_cbranch_scc1 L_first") + fa[ia+1:] + Is("L_first:") + fb[ib+1:] + Is("LM_end:\ns_endpgm")
        self.name = a.name; self.a = a; self.b = b; self.nops = a.nops + b.nops; self.nstamps = a.nstamps
    def text(self):
        body = "\n".join((x.text if x.kind == "label" else "    " + x.text) for x in self.final)
        tab = []
        for j in range(32):
            row = [(18 + POS[j][c]) * 1024 + ((j & 1) * 512 if c == 0 else 0) for c in range(5)]
            row += [(j >> 1) * 1024 + (j & 1) * 512, (16 + (j >> 4)) * 1024 + ((j & 15) >> 2) * 256 + (j & 3) * 4, 0]
            tab.append(".long " + ", ".join(map(str, row)))
        return (f".globl {self.name}\n.p2align 8\n.type {self.name},@function\n{self.name}:\n{body}\n.p2align 6\n.type L_postab,@object\nL_postab:\n" + "\n".join(tab) +
                "\n.type L_kkhtab,@object\nL_kkhtab:\n.long " + ", ".join(map(str, KKH)) + "\n")
    def desc(self): return self.a.desc()
```

```python
import os
KB = 1024
XN   = 0
W1Q  = XN + 64*36*KB
W1S  = W1Q + 32*9*8*KB
PHIA = W1S + 32*5*8*KB
WOT  = PHIA + 32*6*KB
WDA  = WOT + 4*18*9*KB
WDB  = WDA + 4*144*5*KB
WD2  = WDB + 4*144*2*KB
HX   = WD2 + 4*144*2*KB + 64*KB
KVP  = HX + 128*162*KB + 64*KB
PHQ  = KVP + 32*8*6*KB
FLG  = PHQ + 256*4*2*5*KB
FKV  = FLG + 128*KB
XCH  = FLG + 256*KB
SXC  = XCH + 64*4*4*9*KB
WSEND = SXC + 64*4*9*KB + 4*KB
STAMP = 128*1024*1024
WS_BYTES = 268435456
HXROW = 162*KB
HP0 = [0, 21, 62, 103, 144]
OOB = 0x7ffffff0
assert WSEND < STAMP
STAMPOP = os.environ.get("STAMPOP", "s_memrealtime")

def _tables():
    pos = [[0] * 5 for _ in range(32)]
    extras = [(j, 3) for j in range(1, 8)] + [(j, 4) for j in range(8)]
    for j in range(32):
        b, jj = j >> 3, j & 7
        base = HP0[b]
        pos[j][0] = base + (jj >> 1); pos[j][1] = base + 4 + jj; pos[j][2] = base + 12 + jj
        if b: pos[j][3] = base + 20 + jj; pos[j][4] = base + 33 + jj
    pos[0][3] = 20
    for e, (j, c) in enumerate(extras): pos[j][c] = HP0[1 + e // 5] + 28 + e % 5
    kkh = [None] * 144
    for j in range(32):
        kkh[pos[j][0]] = 128 + (j >> 1)
        for c in range(1, 5): kkh[pos[j][c]] = 4 * j + c - 1
    assert sorted(kkh) == list(range(144))
    return pos, kkh
POS, KKH = _tables()
def split_of(hp): return sum(hp >= HP0[i] for i in (1, 2, 3))
def blocks_of(s):
    t1, t2, t3 = (s + 1) & 3, (s + 2) & 3, (s + 3) & 3
    return [2*t2, 2*t2+1, 2*t3, 2*t3+1, 8], [2*t1, 2*t1+1], [2*s, 2*s+1]
```

```python
from core import *
from collections import deque

class After:
    def __init__(self, idx, hard=False): self.idx = idx; self.hard = hard
class Skip:
    def __init__(self, n): self.n = n; self.until = None
class By:
    def __init__(self, idx): self.idx = idx
class Need:
    def __init__(self, idx): self.idx = idx
class Group:
    def __init__(self, ins): self.ins = ins; self.cost = sum(x.cost for x in ins); self.n = len(ins); self.size = sum(x.size for x in ins)

def isvm(e):
    if isinstance(e, Group): return any(x.kind in VMK for x in e.ins)
    return isinstance(e, Ins) and e.kind in VMK

def weave(out, main, pre, post, queues, cap, vmgap=0, reserve=None, nio=1, bgvm=lambda i: 0):
    st = {"clk": 0, "lastvm": -10**9, "lastbg": -10**9}
    needs = [0] * len(queues); flushed = [0, 0]; log = []; weave.log = log
    def flush_by(i):
        for q in queues:
            last = -1
            for n, e in enumerate(q):
                if isinstance(e, By) and e.idx <= i: last = n
            for _ in range(last + 1):
                e = q.popleft()
                if isinstance(e, After) and e.hard: assert e.idx <= i - 1, ('hard After violated', e.idx, i)
                if isinstance(e, Ins): out.append(e); flushed[0] += 1
                elif isinstance(e, Group): out.extend(e.ins); flushed[0] += e.n
            if last >= 0 and flushed[0] > flushed[1]: log.append((i, flushed[0] - flushed[1])); flushed[1] = flushed[0]
    for i, m in enumerate(main):
        flush_by(i)
        for x in pre.get(i, []): out.append(x)
        out.append(m)
        st["clk"] += 4 * m.passes
        fn, fc, fb = cap(m)
        if reserve:
            r = reserve(i); fn -= r; fc -= r; fb -= 4 * r
        fresh = True
        for x in post.get(i, []):
            out.append(x); fn -= 1; fc -= x.cost; fb -= x.size
        fc0 = fc if fc >= cap(m)[1] - 1 else -1
        blocked = set()
        while fn > 0 and fc > 0:
            cand = []
            for qi, q in enumerate(queues):
                if qi in blocked: continue
                while q:
                    e = q[0]
                    if isinstance(e, After):
                        if i >= e.idx: q.popleft(); continue
                        break
                    if isinstance(e, Skip):
                        if e.until is None: e.until = i + e.n
                        if i >= e.until: q.popleft(); continue
                        break
                    if isinstance(e, By): q.popleft(); continue
                    if isinstance(e, Need): needs[qi] = e.idx; q.popleft(); continue
                    cand.append(qi); break
            if not cand: break
            io = [qi for qi in cand if qi < nio]
            qi = min(io, key=lambda x: needs[x]) if io else cand[0]
            q = queues[qi]; e = q[0]
            ism = isinstance(e, Ins) and e.kind == "mfma"
            if isvm(e) and qi < nio and st["clk"] - st["lastvm"] < vmgap(i): blocked.add(qi); continue
            if isvm(e) and qi >= nio and st["clk"] - st["lastbg"] < bgvm(i): blocked.add(qi); continue
            if not ism and (e.cost > fc or e.size > fb) and not (fresh and (isinstance(e, Group) or e.cost > 2 or fc == fc0)): blocked.add(qi); continue
            q.popleft(); fresh = False
            if isvm(e):
                st["lastvm"] = st["clk"]
                if qi >= nio: st["lastbg"] = st["clk"]
            if isinstance(e, Group): out.extend(e.ins); fc -= e.cost; fn -= e.n; fb -= e.size
            else:
                out.append(e)
                if ism: fn, fc, fb = cap(e); st["clk"] += 4 * e.passes
                else: fc -= e.cost; fn -= 1; fb -= e.size
    for q in queues:
        while q:
            e = q.popleft()
            if isinstance(e, Ins): out.append(e)
            elif isinstance(e, Group): out.extend(e.ins)
```

```python
import sys
from core import *
from layout import *
from k23 import Fused
st = len(sys.argv) > 2 and sys.argv[2] == "stamps"
kw = eval(sys.argv[3]) if len(sys.argv) > 3 else {}
k2 = Fused(stamps=st, **kw)
ks = [k2]; launches = [(k2.name, 256, 256, 163840)]
hdr = ''.join(l for l in open('recurrent_scan__linear_kernel_hedgehog__swiglu_ffn__prompt.s.ref').readlines()[:12])
emit_file(sys.argv[1], launches, ks, hdr)
print("nops", [k.nops for k in ks], "ninstr", [len(k.final) for k in ks], "sgpr", k2.a.S.nxt)
print(k2.a.alloc)
print(k2.a.marks, k2.a.log); print(k2.b.marks, k2.b.log)
print('nstamps', k2.nstamps)
print('maxvm', insert_waits.maxvm)
```

```python
from core import *
from layout import *
from weave import *

NPAGE = 20
SCR = 15 * 8192
PHPAGE = 14
LOG2E = 0x3fb8aa3b
RING0 = 48; NRING = 6; DEPTH = 5
E0 = 72
def T(t): return 96 + 16 * t
def vr(a, n): return f"v[{a}:{a+n-1}]"
def q4(base, n): return [base + 4 * i for i in range(n)]
def xreg(kk, tb):
    n = kk * 2 + tb
    return f"a[{4*n}:{4*n+3}]" if n < 64 else vr(16 + 4 * (n - 64), 4)

class SR:
    def __init__(self): self.m = {}; self.nxt = 16
    def __getattr__(self, n):
        if n.startswith("_"): raise AttributeError
        return f"s{self.m[n]}"
    def new(self, *names, pair=False):
        for n in names:
            if pair:
                self.nxt += self.nxt & 1; self.m[n] = self.nxt; self.nxt += 2
            else: self.m[n] = self.nxt; self.nxt += 1
    def alias(self, n, old): self.m[n] = self.m[old]
    def p(self, n): return f"s[{self.m[n]}:{self.m[n]+1}]"
    def hi(self, n): return f"s{self.m[n]+1}"

def build(first, stamps=False, trace=0, tstart=0, stset=(), LOOK=5, LOOKSG=9, PRO=1, VG1=40, VG=64, VG5=128, VG3=40, LEADB=70, LEADO=200, VGS=200, POLL=50, PB=3, TAIL=64, ACK=80, P3=60, C3=140, P4=230, C4=310, SACK=40, LATE=20, PSN=84, LOOK3=4, dbg='', TOUCH='', TW0=364, TW1=410, TW2=506, XAT=12, SLP=8, WDAT=20, STV=('', '', 'aw'), TSO=24, NTS='', BG1=224, AB=True, TS0=6, TSD=22, WD0=30, WDD=14,
          BARS=(0,1,2,3,4,5,6,7,8,9,11,13,15,17,20,23,26,29,32)):
    global NRING, DEPTH
    if trace: NRING, DEPTH = 5, 4
    k = Kernel("main_kernel", vgpr=256, agpr=256, sgpr=102)
    S = SR()
    S.new("tab", pair=True); S.nxt = 24
    S.new("i", "j", "wl", "wsg", "xb0", "xb1", "qb", "sb", "sgb", "phia", "ta0", "ta1", "tb0", "tb1", "t2", "t3", "t4")
    S.new("h0a", "h0b", "h1a", "h1b", "h2a", "h2b", "h3a", "h3b", "h4a", "h4b", "oa", "ob", "ota", "otb")
    S.new("phq", "kvp", "kvg", "fkl", "fko", "fo", "L", "nL", "scrw", "redb", "sp", "idx", "nonce")
    S.new("hi32", "lo32", "mown", "ml3", "msnd", pair=True)
    S.new("fol")
    S.m["wdb"] = 19; S.m["wd2"] = 20; S.m["snd"] = 21; S.m["xchw"] = 22; S.m["fin"] = 23
    for n, o in (("wot", "xb0"), ("sxc", "xb1"), ("g2", "sb"), ("bb0", "qb"), ("bb1", "phia"), ("rc1", "h2a"), ("rc2", "h0a"), ("rc3", "h0b"), ("g1a", "h1a"), ("sxo", "h1b"),
                 ("xo0", "kvp"), ("xo1", "redb"), ("xo2", "h2b"), ("c58", "fko"), ("xo3", "kvg"), ("c59", "fkl"), ("g1b", "phq")): S.alias(n, o)
    S.m["tso"] = 17; S.m["wda"] = 16; S.m["mwd"] = 12
    ST0 = S.nxt + (S.nxt & 1)
    nst = [0]
    def stamp():
        if not stamps: return []
        i = nst[0]; nst[0] += 1
        assert ST0 + 2 * i + 1 < 100, "too many stamps"
        return Is(f"{STAMPOP} s[{ST0+2*i}:{ST0+2*i+1}]")
    H = [(S.h0a, S.h0b), (S.h1a, S.h1b), (S.h2a, S.h2b), (S.h3a, S.h3b), (S.h4a, S.h4b)]
    SC = "" if "plainh" in dbg else (" nt sc1" if "nth" in dbg else " sc1")
    BSC = "" if "plainb" in dbg else " sc1"

    def h_unit(src, cls, tb, off, oq, tag):
        L = []; m = E0 + 8
        for p in range(2):
            g = [src + 4 * p + i for i in range(4)]; u = [src + 8 + 4 * p + i for i in range(4)]
            for i in range(4): L += Is(f"v_mul_f32 v{m+i}, {S.nL}, v{g[i]}")
            for i in range(4): L += Is(f"v_exp_f32 v{m+i}, v{m+i}\nv_mul_f32 v{u[i]}, v{g[i]}, v{u[i]}")
            for i in range(4): L += Is(f"v_add_f32 v{m+i}, 1.0, v{m+i}")
            for i in range(4): L += Is(f"v_rcp_f32 v{m+i}, v{m+i}")
            for i in range(4): L += Is(f"v_mul_f32 v{u[i]}, v{u[i]}, v{m+i}")
            L += Is(f"v_cvt_pk_bf16_f32 v{oq+2*p}, v{u[0]}, v{u[1]}\nv_cvt_pk_bf16_f32 v{oq+2*p+1}, v{u[2]}, v{u[3]}")
        L += Is(f"buffer_store_dwordx4 {vr(oq,4)}, v3, s[4:7], {H[cls][tb]} offen offset:{off}{SC}", tag)
        return L
    def softmax(P, X):
        L = []
        mx, mn, a, b, sp, sn = X, X + 1, X + 2, X + 3, X + 4, X + 5
        L += Is(f"v_max3_f32 v{mx}, v{P[0]}, v{P[1]}, v{P[2]}\nv_min3_f32 v{mn}, v{P[0]}, v{P[1]}, v{P[2]}")
        for i in range(3, 17, 2):
            L += Is(f"v_max3_f32 v{mx}, v{mx}, v{P[i]}, v{P[i+1]}\nv_min3_f32 v{mn}, v{mn}, v{P[i]}, v{P[i+1]}")
        L += Is(f"v_max_f32 v{mx}, v{mx}, v{P[17]}\nv_min_f32 v{mn}, v{mn}, v{P[17]}")
        L += Is(f"v_mul_f32 v{a}, {S.nL}, v{mx}\nv_mul_f32 v{b}, {S.L}, v{mn}")
        for i in range(18):
            L += Is(f"v_fma_f32 v{E0+i}, v{P[i]}, {S.L}, v{a}\nv_fma_f32 v{P[i]}, v{P[i]}, {S.nL}, v{b}")
            L += Is(f"v_exp_f32 v{E0+i}, v{E0+i}\nv_exp_f32 v{P[i]}, v{P[i]}")
            if i == 2: L += Is(f"v_add_f32 v{sp}, v{E0}, v{E0+1}\nv_add_f32 v{sn}, v{P[0]}, v{P[1]}")
            elif i > 2: L += Is(f"v_add_f32 v{sp}, v{sp}, v{E0+i-1}\nv_add_f32 v{sn}, v{sn}, v{P[i-1]}")
        L += Is(f"v_mov_b32 v{E0+18}, 0\nv_add_f32 v{sp}, v{sp}, v{E0+17}\nv_add_f32 v{sn}, v{sn}, v{P[17]}")
        L += Is(f"v_rcp_f32 v{sp}, v{sp}\nv_rcp_f32 v{sn}, v{sn}\nv_mov_b32 v{E0+19}, 0")
        for u in range(9):
            L += Is(f"v_mul_f32 v{E0+2*u}, v{E0+2*u}, v{sp}\nv_mul_f32 v{E0+2*u+1}, v{E0+2*u+1}, v{sp}\nv_cvt_pk_bf16_f32 v{E0+u}, v{E0+2*u}, v{E0+2*u+1}")
        for u in range(9):
            L += Is(f"v_mul_f32 v{P[2*u]}, v{P[2*u]}, v{sn}\nv_mul_f32 v{P[2*u+1]}, v{P[2*u+1]}, v{sn}\nv_cvt_pk_bf16_f32 v{E0+9+u}, v{P[2*u]}, v{P[2*u+1]}")
        return L
    spins = []
    DUM = E0 + 19
    def htouch(cls):
        if 'th' not in TOUCH: return []
        return Is(f"""v_lshrrev_b32 v{DUM}, 5, v0
        v_mul_u32_u24 v{DUM}, {HXROW // 128}, v{DUM}
        v_bfe_u32 v15, v0, 2, 3
        v_add_lshl_u32 v{DUM}, v{DUM}, v15, 7""") + [Group(Is(f"s_mov_b64 exec, {S.p('lo32')}\nbuffer_load_dword v{DUM}, v{DUM}, s[4:7], {H[cls][0]} offen sc1\ns_mov_b64 exec, -1"))]
    def setflag(addr, level, tags, vreg):
        return [I(f"v_mov_b32 v{vreg}, {S.nonce}"), I(f"v_add_u32 v{vreg}, {level}, v{vreg}"),
                Group(Is(f"@waitvm {tags}\ns_mov_b64 exec, 1\nbuffer_store_dword v{vreg}, off, s[4:7], {addr} sc1\ns_mov_b64 exec, -1"))]
    def wdaddr(v):
        t = E0 + 17
        return f"""s_mul_i32 {S.ta1}, {S.sp}, 36
        v_lshrrev_b32 v{v}, 2, v0
        v_add_u32 v{t}, {S.ta1}, v{v}
        v_cmp_gt_u32 vcc, 18, v{v}
        s_nop 1
        v_cndmask_b32 v{v}, v{t}, v{v}, vcc
        v_and_b32 v{t}, 1, v{v}
        v_lshlrev_b32 v{t+1}, 9, v{t}
        v_bfe_u32 v{t}, v{v}, 3, 2
        v_lshl_add_u32 v{t+1}, v{t}, 7, v{t+1}
        v_bfe_u32 v{t}, v{v}, 1, 2
        v_lshl_add_u32 v{t+1}, v{t}, 3, v{t+1}
        v_lshrrev_b32 v{t}, 5, v{v}
        v_add_lshl_u32 v{v}, v{t}, v{t+1}, 7
        s_lshr_b32 {S.ta1}, {S.idx}, 3
        s_lshl_b32 {S.ta1}, {S.ta1}, 12
        s_add_u32 {S.ta1}, {S.ta1}, {FLG}
        """
    def polltxt(line, vreg, mask):
        return (f"v_lshlrev_b32 v{vreg}, 5, v0\n" if line != S.ta1 else wdaddr(vreg)) + f"s_mov_b64 exec, {mask}\nbuffer_load_dword v{vreg}, v{vreg}, s[4:7], {line} offen sc1\ns_mov_b64 exec, -1"
    def poll(line, vreg, mask):
        return Group(Is(polltxt(line, vreg, mask)))
    def check(line, vreg, level, mask, name, treg):
        lab = f"{name}_{'f' if first else 'o'}" if name[0] == 'L' else name
        body = f"s_add_u32 {treg}, {S.nonce}, {level}\nv_subrev_u32 v{vreg}, {treg}, v{vreg}\nv_cmp_gt_u32 vcc, 8, v{vreg}\ns_andn2_b64 vcc, {mask}, vcc\n"
        spins.append((lab, line, vreg, body, mask))
        return Group(Is(body + f"s_cbranch_scc1 {lab}_spin\n{lab}_back:"))

    k(stamp())
    if stamps: k('s_mov_b32 s100, 0\ns_mov_b32 s101, 0')
    k(f"""
    s_cmp_ge_u32 s2, 256
    s_cbranch_scc1 LM_end
    s_load_dwordx8 s[44:51], s[0:1], 0
    s_load_dwordx4 s[8:11], s[0:1], 40
    s_load_dwordx2 s[52:53], s[0:1], 56
    s_load_dwordx4 s[56:59], s[0:1], 72
    v_lshrrev_b32 v1, 6, v0
    v_and_b32 v0, 63, v0
    v_readfirstlane_b32 s3, v1
    s_and_b32 {S.t2}, s2, 7
    s_lshr_b32 {S.idx}, s2, 3
    s_and_b32 {S.i}, {S.t2}, 1
    s_lshl_b32 {S.i}, {S.i}, 2
    s_and_b32 {S.t3}, {S.idx}, 3
    s_add_u32 {S.i}, {S.i}, {S.t3}
    s_lshr_b32 {S.sp}, {S.t2}, 1
    s_lshl_b32 {S.j}, {S.sp}, 3
    s_lshr_b32 {S.t3}, {S.idx}, 2
    s_add_u32 {S.j}, {S.j}, {S.t3}
    s_getpc_b64 s[14:15]
    L_pc:
    s_lshl_b32 {S.t3}, {S.j}, 5
    s_add_u32 {S.t3}, {S.t3}, L_postab-L_pc
    s_add_u32 s12, s14, {S.t3}
    s_addc_u32 s13, s15, 0
    s_load_dwordx8 s[16:23], s[12:13], 0
    s_max_u32 {S.t3}, s2, 18
    s_min_u32 {S.t3}, {S.t3}, 161
    s_lshl_b32 {S.t3}, {S.t3}, 2
    s_add_u32 {S.t3}, {S.t3}, L_kkhtab-L_pc-72
    s_add_u32 s12, s14, {S.t3}
    s_addc_u32 s13, s15, 0
    s_load_dword s61, s[12:13], 0
    s_lshl_b32 {S.wl}, s3, 11
    s_lshl_b32 {S.xb0}, {S.i}, 3
    s_lshl_b32 {S.t3}, s3, 1
    s_add_u32 {S.xb0}, {S.xb0}, {S.t3}
    s_mul_i32 {S.xb0}, {S.xb0}, {36*1024}
    s_add_u32 {S.xb0}, {S.xb0}, {XN}
    s_add_u32 {S.xb1}, {S.xb0}, {36*1024}
    s_mul_i32 {S.qb}, {S.j}, {9*8192}
    s_add_u32 {S.qb}, {S.qb}, {S.wl}
    s_add_u32 {S.qb}, {S.qb}, {W1Q}
    s_mul_i32 {S.sb}, {S.j}, {5*8192}
    s_add_u32 {S.sb}, {S.sb}, {S.wl}
    s_add_u32 {S.sb}, {S.sb}, {W1S}
    v_lshlrev_b32 v1, 4, v0
    s_mov_b32 s6, {WS_BYTES}
    s_mov_b32 s7, 0x20000
    v_bfe_u32 v15, v0, 4, 1
    v_lshrrev_b32 v14, 5, v0
    v_lshlrev_b32 v5, 12, v15
    v_lshl_add_u32 v5, v14, 9, v5
    v_bfe_u32 v6, v0, 2, 2
    v_lshl_add_u32 v5, v6, 6, v5
    v_and_b32 v6, 3, v0
    v_lshl_add_u32 v5, v6, 3, v5
    v_xor_b32 v6, 1, v15
    v_lshl_add_u32 v6, v6, 5, v5
    v_lshl_add_u32 v5, v15, 5, v5
    v_add_u32 v7, 0x10000, v5
    v_add_u32 v8, 0x10000, v6
    v_add_u32 v9, 0x20000, v5
    v_add_u32 v10, 0x20000, v6
    v_mov_b32 v201, 0
    v_mov_b32 v183, 0
    v_mov_b32 v163, {OOB}
    v_lshlrev_b32 v96, 5, v0
    v_cmp_gt_u32 vcc, 36, v0
    v_min_u32 v164, 36, v0
    v_lshlrev_b32 v164, 8, v164
    v_cndmask_b32 v96, v163, v96, vcc
    s_lshl_b32 {S.t3}, s3, 5
    s_add_u32 {S.t3}, {S.t3}, {13*8192}
    v_add_u32 v164, {S.t3}, v164
    v_lshrrev_b32 v160, 3, v0
    v_bfe_u32 v161, v0, 2, 1
    v_bfe_u32 v162, v0, 1, 1
    v_xor_b32 v162, v162, v161
    v_and_b32 v166, 1, v0
    v_mul_u32_u24 v97, 3456, v160
    s_mul_i32 {S.t3}, {S.j}, 36
    v_add_u32 v97, {S.t3}, v97
    v_add_u32 v98, 32, v97
    v_lshl_add_u32 v97, v166, 4, v97
    v_add_u32 v167, 1, v162
    v_mul_u32_u24 v167, 1152, v167
    v_mad_u32_u24 v97, v167, v161, v97
    v_cmp_lt_u32 vcc, v161, v162
    v_lshl_add_u32 v167, v162, 1, v166
    v_lshl_add_u32 v167, v161, 2, v167
    v_cndmask_b32 v97, v97, v163, vcc
    v_cmp_eq_u32 vcc, 2, v167
    v_lshlrev_b32 v165, 6, v160
    v_lshl_add_u32 v165, v161, 12, v165
    v_cndmask_b32 v98, v163, v98, vcc
    v_and_b32 v167, 3, v0
    v_lshl_add_u32 v165, v167, 4, v165
    s_and_b32 {S.t3}, s3, 1
    s_lshl_b32 {S.t3}, {S.t3}, 1
    v_add_u32 v160, {S.t3}, v14
    s_lshr_b32 {S.t4}, s3, 1
    v_bfe_u32 v161, v0, 1, 1
    v_xor_b32 v161, {S.t4}, v161
    v_lshl_add_u32 v161, v160, 1, v161
    v_bfe_u32 v162, v0, 2, 3
    v_lshl_add_u32 v161, v161, 6, v162
    s_movk_i32 {S.t4}, 9216
    v_mul_lo_u32 v99, v161, {S.t4}
    v_lshl_add_u32 v99, v166, 4, v99
    v_lshlrev_b32 v166, 13, v160
    v_lshl_add_u32 v166, v162, 6, v166
    v_lshl_add_u32 v166, v167, 4, v166
    v_cmp_eq_u32 vcc, 0, v160
    s_nop 1
    v_cndmask_b32 v167, v163, v166, vcc
    s_lshl_b32 s41, {S.i}, 8
    s_lshl_b32 s42, {S.j}, 3
    s_add_u32 s41, s41, s42
    s_lshl_b32 s42, s3, 1
    s_add_u32 s41, s41, s42
    s_mul_i32 s41, s41, 1152
    s_mul_i32 s42, s3, 192
    s_lshl_b32 s43, {S.i}, 3
    s_add_u32 s42, s42, s43
    s_mul_i32 s42, s42, 3456
    s_mul_i32 s43, {S.i}, {8*9216}
    s_lshl_b32 {S.t3}, {S.j}, 5
    s_add_u32 s43, s43, {S.t3}
    s_add_u32 s43, s43, 8192
    s_waitcnt lgkmcnt(0)
    """)

    def wave_sum(kk, v, sreg):
        for sh in (1, 2, 4, 8):
            kk(f"v_add_f32_dpp v{v}, v{v}, v{v} row_shr:{sh} row_mask:0xf bank_mask:0xf bound_ctrl:0")
        kk(f"v_add_f32_dpp v{v}, v{v}, v{v} row_bcast:15 row_mask:0xa bank_mask:0xf")
        kk(f"v_add_f32_dpp v{v}, v{v}, v{v} row_bcast:31 row_mask:0xc bank_mask:0xf")
        kk(f"v_readlane_b32 s{sreg}, v{v}, 63")
    def rnd(kk, v): kk(f"v_cvt_pk_bf16_f32 v{v}, v{v}, v{v}\nv_lshlrev_b32 v{v}, 16, v{v}")
    LNB = 13 * 8192; WDB_L = 15 * 8192
    if 'st' in dbg: k(stamp())
    NT = ' nt' if 'c' in NTS else ''
    NTT = ' nt' if 't' in NTS else ''
    NTW = ' nt' if 'w' in NTS else ''
    def piece(nm, slot):
        if nm not in STV[slot]: return ""
        if nm in "ac":
            o = " offset:128" if nm == "c" else ""; r = 169 if nm == "a" else 186
            return f"""buffer_load_dword v{r}, v165, s[72:75], s62 offen{o}{NTT}
            buffer_load_dword v{r+1}, v165, s[8:11], s62 offen{o}{NTT}
            buffer_load_dword v{r+2}, v165, s[72:75], s63 offen{o}{NTT}
            buffer_load_dword v{r+3}, v165, s[8:11], s63 offen{o}{NTT}
            s_mov_b64 exec, 0xffff
            buffer_load_dword v{r+4}, v165, s[72:75], s64 offen{o}{NTT}
            buffer_load_dword v{r+5}, v165, s[8:11], s64 offen{o}{NTT}
            s_mov_b64 exec, -1"""
        t = "s_cmp_ge_u32 s2, 162\ns_cbranch_scc1 LS_nowd\n"
        for g_ in range(4):
            if g_ == 1: t += "s_add_u32 s49, s48, s46\n"
            if g_ == 2: t += "s_add_u32 s49, s48, s47\n"
            if g_ == 3: t += "s_add_u32 s49, s49, s46\n"
            for n in range(9):
                t += f"s_mov_b32 m0, {WDB_L + (9*g_+n)*1024}\ns_nop 0\nbuffer_load_dwordx4 v{176+n}, s[52:55], s{48 if g_ == 0 else 49} offen{NTW} lds\n"
        return t + "LS_nowd:"
    k0_ = len(k.ins)
    k(f"""
    s_mov_b32 s4, s58
    s_mov_b32 s5, s59
    s_mov_b32 s68, s44
    s_mov_b32 s69, s45
    s_mov_b32 s70, {2048*1152}
    s_mov_b32 s71, 0x20000
    s_mov_b32 s54, 0
    s_mov_b32 s55, 0x20000
    buffer_load_dwordx4 v[100:103], v96, s[68:71], s41 offen{NT}
    buffer_load_dwordx4 v[104:107], v96, s[68:71], s41 offen offset:16{NT}
    buffer_load_dwordx4 v[132:135], v96, s[68:71], s41 offen offset:1152{NT}
    buffer_load_dwordx4 v[136:139], v96, s[68:71], s41 offen offset:1168{NT}
    s_cmp_eq_u32 s3, 3
    s_cbranch_scc1 LS_w3a
    s_mov_b32 s72, s46
    s_mov_b32 s73, s47
    s_mov_b32 s74, {576*3456}
    s_mov_b32 s75, 0x20000
    """)
    for r in range(3):
        k(f"""buffer_load_dwordx4 v[{168+8*r}:{171+8*r}], v97, s[72:75], s42 offen{NT}
        buffer_load_dword v{172+8*r}, v98, s[72:75], s42 offen{NT}
        buffer_load_dword v{173+8*r}, v98, s[72:75], s42 offen offset:1152{NT}
        buffer_load_dword v{174+8*r}, v98, s[72:75], s42 offen offset:2304{NT}""")
        if r < 2: k(f"s_add_u32 s42, s42, {64*3456}")
    k(f"""
    s_cmp_ge_u32 s3, 2
    s_cselect_b32 s8, s10, s8
    s_cselect_b32 s9, s11, s9
    s_mov_b32 s10, {576*9216}
    s_mov_b32 s11, 0x20000
    buffer_load_dwordx4 v[192:195], v99, s[8:11], s43 offen{NT}
    s_cselect_b32 s42, {256*9216}, 0
    s_add_u32 s42, s42, s43
    buffer_load_dwordx4 v[196:199], v99, s[8:11], s42 offen{NT}
    s_add_u32 s42, s43, {512*9216}
    buffer_load_dwordx4 v[232:235], v99, s[8:11], s42 offen{NT}
    s_or_b32 s42, s2, s3
    s_cmp_lg_u32 s42, 0
    s_cbranch_scc1 LS_nonce
    s_memrealtime s[42:43]
    s_waitcnt lgkmcnt(0)
    s_lshl_b32 s42, s42, 4
    s_max_u32 s42, s42, 16
    v_mov_b32 v200, s42
    global_store_dword v201, v200, s[56:57] sc1
    LS_nonce:
    s_cmp_lg_u32 s3, 1
    s_cbranch_scc1 LS_nophi
    s_cmp_ge_u32 {S.i}, 6
    s_cbranch_scc1 LS_nophi
    s_mov_b32 s76, s48
    s_mov_b32 s77, s49
    s_mov_b32 s78, {32*648}
    s_mov_b32 s79, 0x20000
    s_cmp_ge_u32 {S.i}, 3
    s_cselect_b32 s42, 1, 0
    s_mul_i32 s43, s42, 3
    s_sub_u32 s43, {S.i}, s43
    v_and_b32 v203, 31, v0
    v_lshrrev_b32 v204, 5, v0
    v_bfe_u32 v205, v203, 2, 1
    v_lshrrev_b32 v206, 3, v203
    v_lshlrev_b32 v206, 2, v206
    v_and_b32 v207, 3, v203
    v_add_u32 v206, v206, v207
    s_lshl_b32 s42, s42, 4
    v_add_u32 v206, s42, v206
    s_mul_i32 s42, {S.j}, 648
    v_lshlrev_b32 v207, 1, v206
    v_add_u32 v207, s42, v207
    v_cmp_gt_u32 vcc, 18, v206
    v_mov_b32 v228, 0
    v_mov_b32 v229, 0
    v_cndmask_b32 v207, v163, v207, vcc
    v_mov_b32 v230, 0
    v_mov_b32 v231, 0
    s_cmp_eq_u32 s43, 2
    s_cbranch_scc1 LS_p2
    v_cmp_eq_u32 vcc, s43, v205
    v_mul_u32_u24 v208, {4*36}, v204
    s_nop 0
    v_cndmask_b32 v207, v163, v207, vcc
    v_add_u32 v207, v207, v208
    """)
    for i_ in range(8):
        d = (i_ & 3) + 8 * (i_ >> 2)
        k(f"buffer_load_ushort v{224+i_}, v207, s[76:79], 0 offen offset:{d*36}")
    k(f"""s_branch LS_nophi
    LS_p2:
    v_cmp_eq_u32 vcc, 0, v204
    s_nop 1
    v_cndmask_b32 v207, v163, v207, vcc
    v_cmp_eq_u32 vcc, 0, v205
    s_nop 1
    v_cndmask_b32 v208, v163, v207, vcc
    v_cndmask_b32 v209, v207, v163, vcc
    buffer_load_ushort v224, v208, s[76:79], 0 offen offset:{16*36}
    buffer_load_ushort v225, v208, s[76:79], 0 offen offset:{17*36}
    buffer_load_ushort v226, v209, s[76:79], 0 offen offset:{16*36}
    buffer_load_ushort v227, v209, s[76:79], 0 offen offset:{17*36}
    LS_nophi:
    s_waitcnt vmcnt(15)
    s_branch LS_ln
    LS_w3a:
    s_mov_b32 s72, s8
    s_mov_b32 s73, s9
    s_mov_b32 s74, {576*9216}
    s_mov_b32 s75, 0x20000
    s_mov_b32 s8, s10
    s_mov_b32 s9, s11
    s_mov_b32 s10, {576*9216}
    s_mov_b32 s11, 0x20000
    s_mul_i32 s41, {S.idx}, 3072
    v_lshlrev_b32 v97, 7, v0
    v_add_u32 v97, s41, v97
    v_min_u32 v97, L_code_end-L_pc, v97
    s_mov_b64 exec, 0xffffff
    global_load_dword v168, v97, s[14:15]
    s_mov_b64 exec, -1
    s_and_b32 s62, {S.i}, 3
    s_mul_i32 s62, s62, {144*9216}
    s_lshl_b32 s43, {S.j}, 8
    s_add_u32 s62, s62, s43
    s_add_u32 s63, s62, {64*9216}
    s_add_u32 s64, s62, {128*9216}
    v_mul_u32_u24 v165, 9216, v0
    s_lshl_b32 s48, s61, 5
    s_mul_i32 s49, s2, 36
    s_cmp_lt_u32 s2, 18
    s_cselect_b32 s52, s50, s52
    s_cselect_b32 s53, s51, s53
    s_mov_b32 s54, {4608*1152}
    s_cselect_b32 s54, {576*1152}, s54
    s_mov_b32 s44, 2
    s_mov_b32 s45, 8
    s_mov_b32 s46, 4
    s_cselect_b32 s47, 18, 16
    s_cselect_b32 s48, s49, s48
    s_sub_u32 s49, s2, 16
    s_mul_i32 s43, s49, 288
    s_add_u32 s43, s43, 16
    s_cmp_lt_u32 s49, 2
    s_cselect_b32 s48, s43, s48
    s_cselect_b32 s44, 18, s44
    s_cselect_b32 s45, 36, s45
    s_cselect_b32 s46, 72, s46
    s_cselect_b32 s47, 144, s47
    s_mul_i32 s48, s48, 1152
    s_mul_i32 s46, s46, 1152
    s_mul_i32 s47, s47, 1152
    s_movk_i32 s51, 1152
    """)
    if 'w' in ''.join(STV):
      for n in range(9):
        d_ = 176 + n
        k(f"""v_add_u32 v{d_}, {64*n}, v0
        v_mul_u32_u24 v97, 911, v{d_}
        v_lshrrev_b32 v97, 16, v97
        v_mul_u32_u24 v98, 72, v97
        v_sub_u32 v{d_}, v{d_}, v98
        v_and_b32 v98, 1, v97
        v_bfe_u32 v99, v97, 1, 1
        v_mad_u32_u24 v98, v99, s44, v98
        v_lshrrev_b32 v99, 2, v97
        v_mad_u32_u24 v98, v99, s45, v98
        v_mul_u32_u24 v98, s51, v98
        v_lshl_add_u32 v{d_}, v{d_}, 4, v98""")
    k("s_waitcnt vmcnt(1)\nLS_ln:")
    if 'st' in dbg: k(stamp())
    k("v_cmp_gt_u32 vcc, 36, v0")
    rows = []
    for r in range(2):
        kk = Kernel("tmp", 64)
        P = 100 + 32 * r; F = 108 + 32 * r; a_ = 124 + 32 * r; m_ = a_ + 1; t_ = a_ + 2; d_ = a_ + 3
        for i_ in range(8): kk(f"v_lshlrev_b32 v{F+2*i_}, 16, v{P+i_}\nv_and_b32 v{F+1+2*i_}, 0xffff0000, v{P+i_}")
        kk(f"v_add_f32 v{a_}, v{F}, v{F+1}")
        for i_ in range(2, 16): kk(f"v_add_f32 v{a_}, v{a_}, v{F+i_}")
        wave_sum(kk, a_, 41 + r)
        kk(f"v_mov_b32 v{m_}, 0x3ae38e39\nv_mul_f32 v{m_}, s{41+r}, v{m_}")
        kk(f"v_sub_f32 v{t_}, v{F}, v{m_}\nv_mul_f32 v{a_}, v{t_}, v{t_}")
        for i_ in range(1, 16): kk(f"v_sub_f32 v{t_}, v{F+i_}, v{m_}\nv_fmac_f32 v{a_}, v{t_}, v{t_}")
        kk(f"v_cndmask_b32 v{a_}, 0, v{a_}, vcc")
        wave_sum(kk, a_, 41 + r)
        kk(f"v_mov_b32 v{d_}, 0x3ae38e39\nv_mul_f32 v{d_}, s{41+r}, v{d_}")
        rnd(kk, m_); rnd(kk, d_)
        kk(f"v_add_f32 v{d_}, 0x3727c5ac, v{d_}")
        rnd(kk, d_)
        kk(f"v_sqrt_f32 v{d_}, v{d_}")
        rnd(kk, d_)
        kk(f"v_rcp_f32 v{d_}, v{d_}")
        for i_ in range(16): kk(f"v_sub_f32 v{F+i_}, v{F+i_}, v{m_}")
        for i_ in range(8): kk(f"v_cvt_pk_bf16_f32 v{P+i_}, v{F+2*i_}, v{F+1+2*i_}")
        for i_ in range(8): kk(f"v_lshlrev_b32 v{F+2*i_}, 16, v{P+i_}\nv_and_b32 v{F+1+2*i_}, 0xffff0000, v{P+i_}")
        for i_ in range(16): kk(f"v_mul_f32 v{F+i_}, v{F+i_}, v{d_}")
        for i_ in range(8): kk(f"v_cvt_pk_bf16_f32 v{P+i_}, v{F+2*i_}, v{F+1+2*i_}")
        kk(f"ds_write_b128 v164, v[{P}:{P+3}] offset:{16*r}\nds_write_b128 v164, v[{P+4}:{P+7}] offset:{128+16*r}")
        rows.append(kk.ins)
    for n_, (x, y) in enumerate(zip(*rows)):
        k([x, y])
        if n_ == 20: k("global_load_dword v202, v201, s[56:57] sc1")
    if 'st' in dbg: k(stamp())
    k(f"""
    s_cmp_eq_u32 s3, 3
    s_cbranch_scc1 LS_w3b
    s_mul_i32 s41, {S.j}, 9
    s_mul_i32 s42, s3, 3
    s_add_u32 s41, s41, s42
    s_lshl_b32 s41, s41, 13
    s_lshl_b32 s42, {S.i}, 9
    s_add_u32 s41, s41, s42
    s_add_u32 s41, s41, {W1Q}
    s_waitcnt vmcnt(0)
    """)
    for r in range(3):
        b_ = 168 + 8 * r
        k(f"v_or_b32 v{b_}, v{b_}, v{b_+4}\nv_or_b32 v{b_+1}, v{b_+1}, v{b_+5}\nv_or_b32 v{b_+2}, v{b_+2}, v{b_+6}")
        k(f"buffer_store_dwordx4 v[{b_}:{b_+3}], v165, s[4:7], s41 offen sc1")
        if r < 2: k(f"s_add_u32 s41, s41, 8192")
    k(f"""
    s_mul_i32 s41, {S.j}, {5*8192}
    s_add_u32 s41, s41, s42
    s_lshr_b32 s43, s3, 1
    s_lshl_b32 s43, s43, 12
    s_add_u32 s41, s41, s43
    s_add_u32 s41, s41, {W1S}
    buffer_store_dwordx4 v[192:195], v166, s[4:7], s41 offen sc1
    s_add_u32 s42, s41, {2*8192}
    s_cmp_eq_u32 s3, 2
    s_cselect_b32 s42, s42, {OOB}
    buffer_store_dwordx4 v[196:199], v166, s[4:7], s42 offen sc1
    s_add_u32 s41, s41, {4*8192}
    buffer_store_dwordx4 v[232:235], v167, s[4:7], s41 offen sc1
    s_cmp_lg_u32 s3, 1
    s_cbranch_scc1 LS_nophi2
    s_cmp_ge_u32 {S.i}, 6
    s_cbranch_scc1 LS_nophi2
    v_lshl_or_b32 v216, v225, 16, v224
    v_lshl_or_b32 v217, v227, 16, v226
    v_lshl_or_b32 v218, v229, 16, v228
    v_lshl_or_b32 v219, v231, 16, v230
    s_mul_i32 s42, {S.j}, 6
    s_add_u32 s42, s42, {S.i}
    s_lshl_b32 s42, s42, 10
    s_add_u32 s42, s42, {PHIA}
    buffer_store_dwordx4 v[216:219], v1, s[4:7], s42 offen sc1
    LS_nophi2:
    s_lshl_b32 s41, {S.i}, 3
    s_lshr_b32 s42, {S.j}, 2
    s_add_u32 s41, s41, s42
    s_mul_i32 s41, s41, {36*1024}
    s_and_b32 s42, {S.j}, 3
    s_lshl_b32 s42, s42, 7
    s_add_u32 s41, s41, s42
    s_mul_i32 s42, s3, 12288
    s_add_u32 s41, s41, s42
    s_add_u32 s41, s41, {XN}
    s_add_u32 s42, s41, 0x1000
    s_add_u32 s43, s41, 0x2000
    s_mul_i32 s44, s3, 3072
    s_add_u32 s44, s44, {LNB}
    v_add_u32 v160, s44, v1
    v_lshrrev_b32 v161, 3, v0
    v_lshlrev_b32 v161, 9, v161
    v_and_b32 v162, 7, v0
    v_lshl_add_u32 v161, v162, 4, v161
    s_waitcnt lgkmcnt(0)
    s_barrier
    ds_read_b128 v[100:103], v160
    ds_read_b128 v[104:107], v160 offset:1024
    ds_read_b128 v[108:111], v160 offset:2048
    s_waitcnt lgkmcnt(2)
    buffer_store_dwordx4 v[100:103], v161, s[4:7], s41 offen sc1
    s_waitcnt lgkmcnt(1)
    buffer_store_dwordx4 v[104:107], v161, s[4:7], s42 offen sc1
    s_waitcnt lgkmcnt(0)
    buffer_store_dwordx4 v[108:111], v161, s[4:7], s43 offen sc1
    s_branch LS_nz
    LS_w3b:
    s_waitcnt lgkmcnt(0)
    s_barrier
    s_waitcnt vmcnt(0)
    {piece('a', 1)}
    {piece('c', 1)}
    {piece('w', 1)}
    LS_nz:
    s_lshl_b32 s41, {S.i}, 2
    s_add_u32 s41, s41, s3
    s_lshl_b32 {S.fol}, s41, 12
    s_add_u32 {S.fol}, {S.fol}, {FLG}
    s_lshl_b32 s41, {S.j}, 7
    s_add_u32 {S.fo}, {S.fol}, s41
    s_mov_b32 s41, 400000
    LS_nw:
    v_readfirstlane_b32 {S.nonce}, v202
    s_cmp_lg_u32 {S.nonce}, 0
    s_cbranch_scc1 LS_nok
    global_load_dword v202, v201, s[56:57] sc1
    s_waitcnt vmcnt(0)
    s_sub_u32 s41, s41, 1
    s_cmp_lg_u32 s41, 0
    s_cbranch_scc1 LS_nw
    LS_nok:
    s_cmp_eq_u32 s3, 3
    s_cbranch_scc1 LS_w3c
    s_add_u32 s44, {S.nonce}, 1
    v_mov_b32 v200, s44
    v_lshlrev_b32 v96, 7, v0
    s_lshl_b32 s41, {S.i}, 14
    v_add_u32 v96, s41, v96
    v_and_b32 v97, 7, v0
    v_lshlrev_b32 v97, 14, v97
    s_lshl_b32 s43, {S.j}, 7
    v_add_u32 v97, s43, v97
    v_cmp_gt_u32 vcc, 32, v0
    s_mov_b32 s45, 400000
    s_mov_b32 s41, {FLG}
    v_cndmask_b32 v96, v97, v96, vcc
    s_waitcnt vmcnt(0)
    s_barrier
    """)
    if 'st' in dbg: k(stamp())
    k(f"""
    s_cmp_lg_u32 s3, 0
    s_cbranch_scc1 LS_join
    s_mov_b64 exec, 1
    buffer_store_dword v200, off, s[4:7], {S.fo} sc1
    s_mov_b64 exec, -1
    s_sleep {SLP}
    LS_pl:
    buffer_load_dword v100, v96, s[4:7], s41 offen sc1
    s_waitcnt vmcnt(0)
    v_subrev_u32 v100, s44, v100
    v_cmp_le_u32 vcc, 8, v100
    s_nop 4
    s_cbranch_vccz LS_join
    s_sub_u32 s45, s45, 1
    s_cmp_lg_u32 s45, 0
    s_cbranch_scc1 LS_pl
    s_branch LS_join
    LS_w3c:
    s_barrier
    """)
    if 'st' in dbg: nst[0] -= 1; k(stamp())
    k(f"""
    {piece('a', 2)}
    {piece('c', 2)}
    {piece('w', 2)}
    LS_join:
    s_barrier
    """)
    for x in k.ins[k0_:]:
        if x.kind in VMK: x.kind = "cond" if x.kind != "dma" else "conddma"
        if x.kind == "ds": x.kind = "condds"
        if x.op == "s_waitcnt": x.note = "raw"
    k("@reset")
    k(stamp())
    wdrow = [Group(Is(f"""
    s_lshl_b32 s48, s61, 5
    s_mul_i32 s49, s2, 36
    s_cmp_lt_u32 s2, 18
    s_cselect_b32 s12, s50, s52
    s_cselect_b32 s13, s51, s53
    s_mov_b32 s14, {4608*1152}
    s_cselect_b32 s14, {576*1152}, s14
    s_mov_b32 s15, 0x20000
    s_mov_b32 s44, 2
    s_mov_b32 s45, 8
    s_mov_b32 s46, 4
    s_cselect_b32 s47, 18, 16
    s_cselect_b32 s48, s49, s48
    s_sub_u32 s49, s2, 16
    s_mul_i32 s43, s49, 288
    s_add_u32 s43, s43, 16
    s_cmp_lt_u32 s49, 2
    s_cselect_b32 s48, s43, s48
    s_cselect_b32 s44, 18, s44
    s_cselect_b32 s45, 36, s45
    s_cselect_b32 s46, 72, s46
    s_cselect_b32 s47, 144, s47"""))] + Is(f"""
    s_and_b32 s49, s3, 1
    s_mul_i32 s49, s49, s46
    s_add_u32 s48, s48, s49
    s_lshr_b32 s49, s3, 1
    s_mul_i32 s49, s49, s47
    s_add_u32 s48, s48, s49
    s_mul_i32 s48, s48, 1152
    s_movk_i32 s41, 1152""") + [Group(Is(f"s_cmp_ge_u32 s2, 162\ns_cselect_b32 s48, {OOB}, s48"))]
    t5, t6, t7 = T(9) + 15, T(8) + 14, T(8) + 15
    for n in range(9):
        d_ = T(9) + n
        wdrow += Is(f"""v_add_u32 v{d_}, {64*n}, v0
        v_mul_u32_u24 v{t5}, 911, v{d_}
        v_lshrrev_b32 v{t5}, 16, v{t5}
        v_mul_u32_u24 v{t6}, 72, v{t5}
        v_sub_u32 v{d_}, v{d_}, v{t6}
        v_and_b32 v{t6}, 1, v{t5}
        v_bfe_u32 v{t7}, v{t5}, 1, 1
        v_mad_u32_u24 v{t6}, v{t7}, s44, v{t6}
        v_lshrrev_b32 v{t7}, 2, v{t5}
        v_mad_u32_u24 v{t6}, v{t7}, s45, v{t6}
        v_mul_u32_u24 v{t6}, s41, v{t6}
        v_lshl_add_u32 v{d_}, v{d_}, 4, v{t6}
        v_add_u32 v{d_}, s48, v{d_}""")
    tsprep = Is(f"""
    s_and_b32 s41, s3, 1
    s_mul_i32 s41, s41, 36
    s_mul_i32 s42, {S.i}, 72
    s_add_u32 s41, s41, s42
    s_mul_i32 s41, s41, 9216
    s_lshl_b32 s42, {S.j}, 8
    s_add_u32 s41, s41, s42
    v_mul_u32_u24 v{T(8)+13}, 9216, v0
    v_add_u32 v{T(8)+13}, s41, v{T(8)+13}
    v_mov_b32 v{T(8)+12}, {OOB}
    v_cmp_gt_u32 vcc, 9, v0
    s_nop 1
    v_cndmask_b32 v{T(8)+13}, v{T(8)+12}, v{T(8)+13}, vcc
    """)
    wdaddr_code = Is(f"""
    v_lshrrev_b32 v{T(9)+14}, 4, v0
    v_lshlrev_b32 v{T(9)+14}, 3, v{T(9)+14}
    v_bfe_u32 v{T(9)+15}, v0, 2, 2
    v_add_u32 v{T(9)+14}, v{T(9)+14}, v{T(9)+15}
    v_mul_u32_u24 v{T(9)+14}, 1152, v{T(9)+14}
    v_and_b32 v{T(9)+15}, 3, v0
    v_lshl_add_u32 v{T(9)+14}, v{T(9)+15}, 3, v{T(9)+14}
    s_mul_i32 s41, s3, 288
    s_add_u32 s41, s41, {WDB_L}
    v_add_u32 v{T(9)+14}, s41, v{T(9)+14}
    s_sub_u32 s41, s2, 18
    s_mul_i32 s42, s3, 144
    s_add_u32 s42, s42, s41
    s_mul_i32 s44, s42, 5120
    s_add_u32 s44, s44, {WDA}
    s_lshl_b32 s45, s42, 11
    s_add_u32 s46, s45, {WD2}
    s_add_u32 s45, s45, {WDB}
    s_add_u32 s47, s44, 2048
    s_add_u32 s50, s44, 4096
    s_mul_i32 s51, s3, 72
    s_add_u32 s51, s51, s2
    s_mul_i32 s51, s51, 3072
    s_add_u32 s51, s51, {WOT}
    """)
    wdaddr_code.append(Group(Is(f"s_mov_b32 s43, 0\ns_cmp_ge_u32 s41, {HP0[1]}\ns_cselect_b32 s43, 1, s43\ns_cmp_ge_u32 s41, {HP0[2]}\ns_cselect_b32 s43, 2, s43\ns_cmp_ge_u32 s41, {HP0[3]}\ns_cselect_b32 s43, 3, s43")))
    for t_ in range(5):
        g_ = f"""s_sub_u32 s42, {t_}, s43
            s_and_b32 s42, s42, 3
            s_cmp_eq_u32 s42, 1
            s_cselect_b32 s48, s45, s46
            s_cmp_eq_u32 s42, 2
            s_cselect_b32 s48, s44, s48
            s_cmp_eq_u32 s42, 3
            s_cselect_b32 s48, s47, s48
            """ if t_ < 4 else "s_mov_b32 s48, s50\n"
        wdaddr_code.append(Group(Is(g_ + f"""s_add_u32 s42, s51, {t_*18*3072 if t_ < 4 else 2048}
            s_cmp_lt_u32 s2, 18
            s_cselect_b32 s48, s42, s48
            s_cmp_ge_u32 s2, 162
            s_cselect_b32 s48, {OOB}, s48
            v_add_u32 v{T(9)+9+t_}, s48, v1""")))
    wdaddr_code.append(Group(Is(f"s_add_u32 s42, s51, {18*3072 + 2048}\ns_cmp_lt_u32 s2, 18\ns_cselect_b32 s48, s42, {OOB}\nv_add_u32 v{T(9)+8}, s48, v1")))
    setup = Is(f"""
    s_lshr_b32 {S.t3}, s3, 1
    s_and_b32 {S.t4}, s3, 1
    s_lshl_b32 {S.wsg}, {S.t3}, 12
    s_lshl_b32 {S.t2}, {S.t4}, 11
    s_add_u32 {S.wsg}, {S.wsg}, {S.t2}
    s_mul_i32 {S.sgb}, {S.t4}, {32*9216}
    s_lshl_b32 {S.t2}, {S.j}, 8
    s_add_u32 {S.sgb}, {S.sgb}, {S.t2}
    v_lshrrev_b32 v2, 2, v0
    s_movk_i32 {S.t2}, 9216
    v_mul_lo_u32 v2, v2, {S.t2}
    v_bfe_u32 v3, v0, 1, 1
    v_xor_b32 v3, {S.t3}, v3
    v_lshlrev_b32 v3, 5, v3
    v_and_b32 v4, 1, v0
    v_lshlrev_b32 v4, 4, v4
    v_add3_u32 v2, v2, v3, v4
    s_mul_i32 {S.phia}, {S.j}, 6144
    s_add_u32 {S.phia}, {S.phia}, {S.wl}
    s_add_u32 {S.phia}, {S.phia}, {PHIA}
    """)
    wdt = []
    for b_ in range(9):
        wdt += Is(f"ds_read_b64_tr_b16 {vr(T(6)+4*b_,2)}, v{T(9)+14} offset:{32*b_}\nds_read_b64_tr_b16 {vr(T(6)+4*b_+2,2)}, v{T(9)+14} offset:{32*b_+4*1152}")
    for b_ in range(9):
        wdt += Is(f"buffer_store_dwordx4 {vr(T(6)+4*b_,4)}, v{T(9)+9+b_//2}, s[4:7], 0 offen offset:{(b_&1)*1024} sc1", "wd")
    for n in range(3):
        x_ = Is(f"s_mov_b32 s79, {n*18*3072}\nbuffer_store_dwordx4 {vr(T(6)+32,4)}, v{T(9)+8}, s[4:7], s79 offen sc1", "wd"); x_[1].cost = 2
        wdt += x_
    setup2 = Is(f"""
    v_bfe_u32 v4, v0, 4, 1
    s_mov_b32 {S.t2}, {HXROW}
    v_mul_lo_u32 v4, v4, {S.t2}
    v_and_b32 v13, 15, v0
    v_lshl_add_u32 v4, v13, 4, v4
    v_lshl_add_u32 v3, v14, 8, v4
    v_cmp_eq_u32 vcc, 0, v14
    v_mov_b32 v15, {OOB}
    s_mul_i32 {S.scrw}, s3, 10240
    v_cndmask_b32 v4, v15, v4, vcc
    s_add_u32 {S.scrw}, {S.scrw}, {SCR}
    v_and_b32 v11, 31, v0
    v_mul_u32_u24 v11, 160, v11
    v_add_u32 v11, {S.scrw}, v11
    v_lshrrev_b32 v12, 2, v0
    v_mul_u32_u24 v12, 160, v12
    v_and_b32 v15, 3, v0
    v_lshl_add_u32 v12, v15, 3, v12
    v_add_u32 v12, {S.scrw}, v12
    v_and_b32 v15, 31, v0
    v_min_u32 v15, 18, v15
    v_lshrrev_b32 v13, 4, v15
    v_mul_u32_u24 v13, 3072, v13
    v_and_b32 v15, 15, v15
    v_lshl_add_u32 v13, v15, 4, v13
    v_lshl_add_u32 v13, v14, 8, v13
    v_lshlrev_b32 v0, 2, v0
    s_lshl_b32 {S.t4}, {S.i}, 4
    s_lshl_b32 {S.t2}, s3, 2
    s_add_u32 {S.t4}, {S.t4}, {S.t2}
    s_mul_i32 {S.t4}, {S.t4}, {HXROW}
    s_add_u32 {S.t4}, {S.t4}, {HX}
    s_add_u32 {S.h0a}, {S.t4}, s16
    s_add_u32 {S.h1a}, {S.t4}, s17
    s_add_u32 {S.h2a}, {S.t4}, s18
    s_add_u32 {S.h3a}, {S.t4}, s19
    s_add_u32 {S.h4a}, {S.t4}, s20
    s_add_u32 {S.oa}, {S.t4}, s21
    s_add_u32 {S.ota}, {S.t4}, s22
    s_add_u32 {S.h0b}, {S.h0a}, {2*HXROW}
    s_add_u32 {S.h1b}, {S.h1a}, {2*HXROW}
    s_add_u32 {S.h2b}, {S.h2a}, {2*HXROW}
    s_add_u32 {S.h3b}, {S.h3a}, {2*HXROW}
    s_add_u32 {S.h4b}, {S.h4a}, {2*HXROW}
    s_add_u32 {S.ob}, {S.oa}, {2*HXROW}
    s_add_u32 {S.otb}, {S.ota}, {2*HXROW}
    s_lshl_b32 {S.phq}, s2, 2
    s_add_u32 {S.phq}, {S.phq}, s3
    s_mul_i32 {S.phq}, {S.phq}, 10240
    s_add_u32 {S.phq}, {S.phq}, {PHQ}
    s_mul_i32 {S.kvg}, {S.j}, {8*6144}
    s_add_u32 {S.kvg}, {S.kvg}, {KVP}
    s_mul_i32 {S.kvp}, {S.i}, 6144
    s_add_u32 {S.kvp}, {S.kvp}, {S.kvg}
    s_mul_i32 {S.t2}, s3, 12288
    s_add_u32 {S.kvg}, {S.kvg}, {S.t2}
    s_min_u32 {S.t2}, s3, 2
    s_lshl_b32 {S.t2}, {S.t2}, 10
    s_add_u32 {S.kvp}, {S.kvp}, {S.t2}
    s_add_u32 {S.redb}, {S.t2}, {SCR}
    s_lshl_b32 {S.fkl}, {S.j}, 12
    s_add_u32 {S.fkl}, {S.fkl}, {FKV}
    s_lshl_b32 {S.t2}, {S.i}, 2
    s_add_u32 {S.t2}, {S.t2}, s3
    s_lshl_b32 {S.t3}, {S.t2}, 7
    s_add_u32 {S.fko}, {S.fkl}, {S.t3}
    s_mov_b32 {S.L}, {LOG2E}
    s_mov_b32 {S.nL}, {LOG2E | 0x80000000}
    s_mov_b32 {S.hi32}, 0
    s_mov_b32 {S.hi('hi32')}, -1
    s_mov_b32 {S.lo32}, -1
    s_mov_b32 {S.hi('lo32')}, 0
    """)
    mini = f"""
    s_and_b32 {S.t4}, s2, 1
    s_lshl_b32 {S.t4}, {S.t4}, 3
    s_and_b32 {S.t2}, {S.idx}, 7
    s_add_u32 {S.t4}, {S.t4}, {S.t2}
    s_lshr_b32 {S.t3}, {S.idx}, 3
    """
    setup3 = Is(mini + f"""
    s_lshl_b32 {S.bb0}, {S.t4}, 3
    s_lshl_b32 {S.t2}, s3, 1
    s_add_u32 {S.bb0}, {S.bb0}, {S.t2}
    s_mul_i32 {S.bb0}, {S.bb0}, {HXROW}
    s_add_u32 {S.bb0}, {S.bb0}, {HX + 18*1024}
    s_mul_i32 {S.t2}, {S.sp}, 36
    s_lshl_b32 {S.wd2}, {S.t2}, 10
    s_add_u32 {S.bb0}, {S.bb0}, {S.wd2}
    s_add_u32 {S.bb1}, {S.bb0}, {HXROW}
    s_mul_i32 {S.wd2}, {S.t3}, 144
    s_add_u32 {S.t2}, {S.t2}, {S.wd2}
    s_mul_i32 {S.wda}, {S.t2}, 5120
    s_add_u32 {S.wda}, {S.wda}, {S.wl}
    s_add_u32 {S.wda}, {S.wda}, {WDA}
    s_lshl_b32 {S.wdb}, {S.t2}, 11
    s_add_u32 {S.wdb}, {S.wdb}, {S.wl}
    s_add_u32 {S.wd2}, {S.wdb}, {WD2}
    s_add_u32 {S.wdb}, {S.wdb}, {WDB}
    s_lshl_b32 {S.wot}, {S.t3}, 2
    s_add_u32 {S.wot}, {S.wot}, {S.sp}
    s_mul_i32 {S.wot}, {S.wot}, {18*3*1024}
    s_add_u32 {S.wot}, {S.wot}, {S.wl}
    s_add_u32 {S.wot}, {S.wot}, {WOT}
    s_lshr_b32 {S.fin}, {S.t4}, 1
    s_lshl_b32 {S.fin}, {S.fin}, 2
    s_and_b32 {S.t2}, {S.t4}, 1
    s_lshl_b32 {S.t2}, {S.t2}, 1
    s_add_u32 {S.fin}, {S.fin}, {S.t2}
    s_lshr_b32 {S.t2}, s3, 1
    s_add_u32 {S.fin}, {S.fin}, {S.t2}
    s_lshl_b32 {S.fin}, {S.fin}, 12
    s_add_u32 {S.fin}, {S.fin}, {FLG}
    s_lshl_b32 {S.t4}, {S.t4}, 2
    s_add_u32 {S.t4}, {S.t4}, {S.t3}
    s_mul_i32 {S.t3}, s3, 9216
    s_mul_i32 {S.xchw}, {S.t4}, {16*9216}
    s_add_u32 {S.xchw}, {S.xchw}, {S.t3}
    s_add_u32 {S.xchw}, {S.xchw}, {XCH}
    s_mul_i32 {S.snd}, {S.sp}, {4*9216}
    s_add_u32 {S.snd}, {S.snd}, {S.xchw}
    s_add_u32 {S.t2}, {S.sp}, 1
    s_and_b32 {S.t2}, {S.t2}, 3
    s_lshl_b32 {S.t2}, {S.t2}, 11
    s_add_u32 {S.g2}, {S.snd}, {S.t2}
    s_lshl_b32 {S.t2}, {S.sp}, 3
    s_lshl_b32 {S.mown}, 0xff, {S.t2}
    s_mov_b32 {S.hi('mown')}, 0
    s_lshr_b32 {S.t2}, {S.idx}, 2
    s_lshl_b32 {S.msnd}, 0x01010101, {S.t2}
    s_mov_b32 {S.hi('msnd')}, 0
    s_and_b32 {S.t4}, s3, 1
    s_and_b32 {S.tso}, {S.i}, 3
    s_lshl_b32 {S.tso}, {S.tso}, 1
    s_add_u32 {S.tso}, {S.tso}, {S.t4}
    s_mul_i32 {S.tso}, {S.tso}, {72*9216}
    s_lshl_b32 {S.t2}, {S.j}, 8
    s_add_u32 {S.tso}, {S.tso}, {S.t2}
    """)
    setup4 = Is(mini + f"""
    s_lshl_b32 {S.xo0}, {S.t4}, 3
    s_lshl_b32 {S.t2}, s3, 1
    s_add_u32 {S.xo0}, {S.xo0}, {S.t2}
    s_mul_i32 {S.xo0}, {S.xo0}, {16*1152}
    s_mul_i32 {S.t2}, {S.t3}, 288
    s_add_u32 {S.xo0}, {S.xo0}, {S.t2}
    s_add_u32 {S.xo2}, {S.xo0}, 256
    s_lshl_b32 {S.t2}, {S.sp}, 6
    s_add_u32 {S.xo0}, {S.xo0}, {S.t2}
    s_add_u32 {S.xo1}, {S.xo0}, {16*1152}
    s_add_u32 {S.xo3}, {S.xo2}, {16*1152}
    s_lshl_b32 {S.t3}, {S.sp}, 11
    s_mov_b32 {S.c58}, 0x3f80
    s_mov_b32 {S.c59}, 0x3f800000
    """)
    for n, (snm, rnm) in enumerate(((None, "rc3"), ("g1a", "rc2"), ("g1b", "rc1"))):
        setup4 += Is(f"s_add_u32 {S.t2}, {S.sp}, {n+1}\ns_and_b32 {S.t2}, {S.t2}, 3")
        if snm: setup4 += Is(f"s_lshl_b32 {S.t4}, {S.t2}, 11\ns_add_u32 s{S.m[snm]}, {S.snd}, {S.t4}")
        setup4 += Is(f"s_mul_i32 {S.t2}, {S.t2}, {4*9216}\ns_add_u32 {S.t2}, {S.t2}, {S.xchw}\ns_add_u32 s{S.m[rnm]}, {S.t2}, {S.t3}")
    def dma_lin(sreg, add, page, tag):
        m = f"s_add_u32 m0, {S.wl}, {page*8192}\n"
        return [Group(Is(m + f"s_add_u32 {S.ta0}, {sreg}, {add}\nbuffer_load_dwordx4 v1, s[4:7], {S.ta0} offen{BSC} lds", tag)),
                Group(Is(m + f"s_nop 0\nbuffer_load_dwordx4 v1, s[4:7], {S.ta0} offen offset:1024{BSC} lds", tag)) if page_safe[0] else I(f"buffer_load_dwordx4 v1, s[4:7], {S.ta0} offen offset:1024{BSC} lds", tag)]
    page_safe = [True]
    def dma_sg(sg, q, pa, pb, tag):
        X = q * 64 * 9216 + sg * 128
        ma = f"s_add_u32 m0, {S.wsg}, {pa*8192}\n"; mb = f"s_add_u32 m0, {S.wsg}, {pb*8192-64}\n"
        return [Group(Is(ma + f"s_add_u32 {S.ta0}, {S.sgb}, {X}\nbuffer_load_dwordx4 v2, s[8:11], {S.ta0} offen lds", tag)),
                Group(Is(mb + f"s_add_u32 {S.ta1}, {S.sgb}, {X + 16*9216 - 1024}\nbuffer_load_dwordx4 v2, s[8:11], {S.ta0} offen offset:64 lds", tag)),
                Group(Is(mb + f"s_nop 0\nbuffer_load_dwordx4 v2, s[8:11], {S.ta1} offen offset:1088 lds", tag)) if page_safe[0] else I(f"buffer_load_dwordx4 v2, s[8:11], {S.ta1} offen offset:1088 lds", tag),
                Group(Is(ma + f"s_nop 0\nbuffer_load_dwordx4 v2, s[8:11], {S.ta1} offen offset:1024 lds", tag))]
    def xloads(q):
        L = Is(f"s_add_u32 {S.tb0}, {S.xb0}, {4096*q}\ns_add_u32 {S.tb1}, {S.xb1}, {4096*q}")
        for kk in range(4 * q, 4 * q + 4):
            for tb in range(2):
                L += Is(f"buffer_load_dwordx4 {xreg(kk,tb)}, v1, s[4:7], {(S.tb0, S.tb1)[tb]} offen offset:{(kk&3)*1024}{BSC}")
        return L
    SINFO = {"A": (S.wda, 5), "O": (S.wot, 3), "B": (S.wdb, 2), "W": (S.wd2, 2)}
    segs = [("AB", 0, 28), ("A", 28, 36), ("B", 28, 36), ("W", 0, 36), ("O", 0, 18)]
    K3S = 40
    k3seq = [(n1, st, p) for nm, s0, s1 in segs for st in range(s0, s1) for n1 in nm for p in range(SINFO[n1][1])]
    k3first = {}; k3last = {}
    for n, (nm, st, p) in enumerate(k3seq):
        pg = (nm, (st * SINFO[nm][1] + p) // 8)
        k3first.setdefault(pg, K3S + n // (8 * PB)); k3last[pg] = K3S + n // (8 * PB)
    k3pages = list(k3first)
    NB = K3S + (len(k3seq) - 1) // (8 * PB) + 1
    BARS = tuple(BARS) + (36, 37, 38, 39) + tuple(range(K3S, NB))
    groups = []
    for q in range(9):
        groups.append(("Q", q, q, [q]))
        if q % 2 == 0: groups.append(("S", q // 2, q, [min(q + 1, 8)]))
    for q in range(9): groups.append(("SG0", q, 9 + q, [9 + q, 18 + q]))
    for q in range(9): groups.append(("SG1", q, 27 + q, [27 + q, 37 + q // 3]))
    for pg in k3pages: groups.append(("K3", pg, k3first[pg], [k3last[pg]]))
    page_rel = {p: -9 for p in range(NPAGE)}
    page_rel[PHPAGE] = 17
    pageof = {}; issue_at = {}
    pubbar = lambda s_: max(b for b in BARS if b <= s_)
    gi = 0
    for t in (-1,) + BARS:
        L = []
        page_safe[0] = t < 9
        while gi < len(groups):
            name, q, need, rels = groups[gi]
            need = pubbar(need)
            if name == "K3":
                if t < 36 or (t >= K3S - 1 and need > t + LOOK3): break
            elif need > (t + (LOOK if name[0:2] != 'SG' else LOOKSG) if t >= 0 else PRO): break
            free = [p for p in range(NPAGE) if page_rel[p] <= t - 2]
            got = []
            for r in rels:
                cand = [p for p in free if p not in got and (p < 15 or (p >= 18 and t >= 26) or t >= 39) and not (p == 0 and name.startswith("SG") and len(got) == 1)]
                if not cand: got = None; break
                cand.sort(key=lambda p: (0 if (p >= 15) else 1, p))
                got.append(cand[0])
            if got is None: break
            for p, r in zip(got, rels): page_rel[p] = r
            tag = f"st{need}"
            L.append(('NEED', need))
            if name == "Q":
                pageof[("Q", q)] = got[0]; L += dma_lin(S.qb, q * 8192, got[0], tag)
                if q % 2 == 1: L += xloads(q)
                if q == 5:
                    L += [Group(Is(f"s_add_u32 m0, {S.wl}, {PHPAGE*8192}\ns_nop 0\nbuffer_load_dwordx4 v1, s[4:7], {S.phia} offen{BSC} lds\nbuffer_load_dwordx4 v1, s[4:7], {S.phia} offen offset:1024{BSC} lds", "st5"))]
            elif name == "S":
                pageof[("S", q)] = got[0]; L += dma_lin(S.sb, q * 8192, got[0], tag) + xloads(2 * q)
            elif name == "K3":
                pageof[("K3", q)] = got[0]; L += dma_lin(SINFO[q[0]][0], q[1] * 8192, got[0], tag)
            else:
                sg = int(name[2]); pageof[("A", sg, q)] = got[0]; pageof[("B", sg, q)] = got[1]
                L += dma_sg(sg, q, got[0], got[1], tag)
            assert need > t, (name, q, need, t)
            L.append(('BY', need))
            gi += 1
        issue_at[t] = L
    assert gi == len(groups)
    k.alloc = {t: len([x for x in L if isvm(x)]) for t, L in issue_at.items()}
    for x in issue_at[-1]:
        if isinstance(x, Ins): k(x)
        elif isinstance(x, Group): k(x.ins)
    frags = []
    def add(t, page, kk, seg, tups):
        frags.append(dict(t=t, a=page * 8192 + (kk & 3) * 1024, seg=seg, big=True, d=[vr(T(x), 16) for x in tups], b=[xreg(kk, 0), xreg(kk, 1)], z=(kk == 0)))
    for kk in range(36):
        q = kk >> 2
        add(q, pageof[("Q", q)], kk, 0, (0, 2)); add(q, pageof[("Q", q)], kk, 1, (1, 3))
        add(q, pageof[("S", q >> 1)], kk, q & 1, (4, 5))
    M2 = 2 * len(frags)
    for kk in range(36):
        q = kk >> 2
        add(9 + q, pageof[("A", 0, q)], kk, 0, (6, 7)); add(9 + q, pageof[("A", 0, q)], kk, 1, (8, 9))
    M3 = 2 * len(frags)
    for kk in range(36):
        q = kk >> 2
        add(18 + q, pageof[("B", 0, q)], kk, 0, (0, 2)); add(18 + q, pageof[("B", 0, q)], kk, 1, (4, 5))
    M4 = 2 * len(frags)
    for kk in range(36):
        q = kk >> 2
        add(27 + q, pageof[("A", 1, q)], kk, 0, (6, 7)); add(27 + q, pageof[("A", 1, q)], kk, 1, (8, 9))
    M5a = 2 * len(frags)
    for kk in range(36): add(36, pageof[("B", 1, kk >> 2)], kk, 0, (0, 2))
    M5b = 2 * len(frags)
    for kk in range(36): add(37 + kk // 12, pageof[("B", 1, kk >> 2)], kk, 1, (4, 5))
    MK = 2 * len(frags)
    ovf = q4(16, 8) + q4(T(0), 4) + q4(T(2), 4) + q4(T(9), 4) + q4(T(5), 4)
    def breg(step, tb):
        n = step * 2 + tb
        if n >= 88: n -= 88
        return f"a[{4*n}:{4*n+3}]" if n < 64 else vr(ovf[n - 64], 4)
    ACC = {"A": [T(6), T(6) + 8, T(7), T(7) + 8, T(8)], "O": [T(1), T(1) + 8, T(8) + 8], "B": [T(3), T(3) + 8], "W": [T(4), T(4) + 8]}
    Mst = {}; Men = {}; firstuse = {}
    for n, (nm, st, p) in enumerate(k3seq):
        Mst.setdefault(nm, 2 * len(frags)); Men[nm] = 2 * len(frags) + 2
        bs = st + (36 if nm == "O" else 0)
        firstuse.setdefault(bs, 2 * len(frags))
        f = st * SINFO[nm][1] + p; a = ACC[nm][p]
        frags.append(dict(t=K3S + n // (8 * PB), a=pageof[("K3", (nm, f // 8))] * 8192 + (f % 8) * 1024, big=False, d=[vr(a, 4), vr(a + 4, 4)], b=[breg(bs, 0), breg(bs, 1)], z=(st == 0)))
    NF = len(frags); MEND = 2 * NF
    def rd(n):
        f = frags[n]; r = RING0 + 4 * (n % NRING)
        if f["big"]:
            return [I(f"ds_read_b64_tr_b16 v[{r+2*h}:{r+2*h+1}], v{5 + 2*((f['a']+h*256) >> 16) + f['seg']} offset:{(f['a']+h*256) & 0xffff}", f"fr{n}") for h in range(2)]
        return [I(f"ds_read_b128 {vr(r,4)}, v{(1, 11, 12)[f['a'] >> 16]} offset:{f['a'] & 0xffff}", f"fr{n}")]
    main = []; pre = {}; post = {}
    for n, f in enumerate(frags):
        r = RING0 + 4 * (n % NRING)
        if n % 2 == 0 and n + 1 < NF: pre[2 * n] = Is(f"@waitlgkm fr{n+1}")
        op = "v_mfma_f32_32x32x16_bf16" if f["big"] else "v_mfma_f32_16x16x32_bf16"
        for tb in range(2):
            main.append(I(f"{op} {f['d'][tb]}, {vr(r,4)}, {f['b'][tb]}, {'0' if f['z'] else f['d'][tb]}"))
    bar_idx = {0: -1}
    k(stamp())
    k("@waitvm st0\ns_barrier")
    for n in range(DEPTH): k(rd(n))
    cur = 0
    for n in range(NF - DEPTH):
        m = n + DEPTH; t = frags[m]["t"]
        p0 = post.setdefault(2 * n, []); p1 = post.setdefault(2 * n + 1, [])
        if t != cur and t in BARS:
            cur = t; bar_idx[t] = 2 * n
            p0 += Is(f"@waitvm st{t}\ns_barrier")
        r = rd(m)
        p0.append(r[0])
        if len(r) > 1: p1.append(r[1])
    ioa = deque()
    for t in BARS:
        if issue_at[t]:
            ioa.append(After(bar_idx[t], True))
            if t == 36:
                ioa.append(Group(Is(f"s_mov_b32 {S.mwd}, -1\ns_mov_b32 {S.hi('mwd')}, {(1 << 22) - 1}")))
                ioa.append(check(S.ta1, E0 + 16, 2, S.p('mwd'), "Lwd", S.ta0))
            for x in issue_at[t]:
                if isinstance(x, tuple): ioa.append(By(bar_idx[x[1]]) if x[0] == 'BY' else Need(bar_idx[x[1]]))
                else: ioa.append(x)
    bg = deque()
    oq = [0]; pfs = []
    def nq():
        oq[0] ^= 1; return E0 + 4 * oq[0]
    assert 'w' in ''.join(STV)
    bg.extend(setup); bg.append(By(bar_idx[2])); bg.extend(wdaddr_code); bg.append(After(WDAT)); bg.extend(wdt)
    if 'c' not in ''.join(STV):
        for n in range(4):
            r_ = T(3) + 12 + n
            post.setdefault(M2 + 12 + TSO * n, []).extend(Is(f"""v_mul_u32_u24 v{r_}, 2304, v0
            s_add_u32 s79, {S.tso}, {n * 18 * 9216}
            s_mov_b64 exec, 0x3ffff
            buffer_load_dword v{r_}, v{r_}, s[8:11], s79 offen offset:128{NTT}
            s_mov_b64 exec, -1"""))
    bg.append(By(bar_idx[5])); bg.extend(setup2); bg.append(After(bar_idx[7])); bg.extend(setflag(S.fo, 2, 'wd', 15)); bg.append(After(bar_idx[8], True)); bg.extend(setup3); bg.append(By(M2 - 2))
    bg.extend(Is(f"v_mov_b32 v{E0+12}, -1\nv_mov_b32 v{E0+13}, -1\nv_mov_b32 v{E0+14}, -1\nv_mov_b32 v{E0+15}, -1"))
    for n in range(2): bg.append(I(f"buffer_store_dwordx4 {vr(E0+12,4)}, v1, s[4:7], {S.g2} offen offset:{n*1024} sc1", "h1"))
    bg.append(After(M2 - 1))
    for tb in range(2):
        a, b = T(2 * tb), T(2 * tb + 1)
        for i in range(8): bg.append(I(f"v_cvt_pk_bf16_f32 v{a+i}, v{a+2*i}, v{a+2*i+1}"))
        for i in range(8): bg.append(I(f"v_cvt_pk_bf16_f32 v{a+8+i}, v{b+2*i}, v{b+2*i+1}"))
    bg.append(By(M2 + 12))
    for tb in range(2): bg.extend(h_unit(T(4 + tb), 0, tb, 0, nq(), "h1"))
    if 'ts' in TOUCH:
        bg.extend(Is(f"""s_and_b32 {S.t2}, {S.i}, 3
        s_lshl_b32 {S.t2}, {S.t2}, 1
        s_and_b32 {S.t3}, s3, 1
        s_add_u32 {S.t2}, {S.t2}, {S.t3}
        s_mul_i32 {S.t2}, {S.t2}, {72*9216}
        s_lshl_b32 {S.t3}, {S.j}, 8
        s_add_u32 {S.t2}, {S.t2}, {S.t3}
        s_add_u32 {S.t2}, {S.t2}, 128
        v_mul_u32_u24 v{T(3)+15}, 2304, v0
        buffer_load_dword v{T(3)+14}, v{T(3)+15}, s[8:11], {S.t2} offen sc1
        s_add_u32 {S.t2}, {S.t2}, {8*9216}
        buffer_load_dword v{T(3)+15}, v{T(3)+15}, s[8:11], {S.t2} offen sc1"""))
    bg.append(I(f"v_mov_b32 v15, 0x3f80"))
    bg.append(After(bar_idx[11], True))
    bg.append(I(f"v_add_u32 v14, {PHPAGE*8192}, v1"))
    for tb in range(2):
        Q = T(2 * tb)
        O = (T(4), T(5)) if tb == 0 else (T(1), T(3))
        for f in range(6): bg.append(I(f"ds_read_b128 {vr(E0+4*f,4)}, v14 offset:{f*1024}"))
        bg.append(I(f"v_lshrrev_b32 v{O[1]}, 7, v0"))
        bg.append(I(f"v_lshl_add_u32 v{O[1]}, v{O[1]}, 3, v11"))
        if tb == 1: bg.append(I(f"v_add_u32 v{O[1]}, 5120, v{O[1]}"))
        bg.append(I(f"ds_write2_b64 v{O[1]}, {vr(Q+12,2)}, {vr(Q+14,2)} offset0:12 offset1:14"))
        bg.append(Group(Is(f"s_mov_b64 exec, {S.p('hi32')}\nds_write_b32 v11, v{Q+8} offset:{tb*5120+128}\nds_write_b32 v11, v15 offset:{tb*5120+132}\ns_mov_b64 exec, -1")))
        bg.append(Skip(2))
        for ob in range(2):
            d = vr(O[ob], 16)
            for hb in range(3):
                bg.append(I(f"v_mfma_f32_32x32x16_bf16 {d}, {vr(E0+4*(3*ob+hb),4)}, {vr(Q+4*hb,4)}, {'0' if hb == 0 else d}"))
        if tb == 1: bg.append(By(M3))
        bg.append(Skip(2))
        P = [O[0] + i for i in range(16)] + [O[1], O[1] + 1]
        bg.extend(softmax(P, O[1] + 2))
        for m in range(5):
            n = tb * 5 + m
            if n % 4 == 0: bg.append(I(f"s_add_u32 {S.t2}, {S.phq}, {n*1024}"))
            bg.append(I(f"buffer_store_dwordx4 {vr(E0+4*m,4)}, v1, s[4:7], {S.t2} offen offset:{(n%4)*1024}", "stash"))
        g = Is(f"s_mov_b64 exec, {S.p('hi32')}")
        for m in range(4): g += Is(f"ds_write_b128 v11, {vr(E0+4*m,4)} offset:{tb*5120+16*m}")
        g += Is(f"ds_write_b64 v11, {vr(E0+16,2)} offset:{tb*5120+64}\ns_mov_b64 exec, -1")
        bg.append(Group(g))
    KA = T(1); KB_ = E0 + 12
    accr = [T(3), T(3) + 4, T(3) + 8, T(3) + 12, T(1) + 12, E0 + 20]
    for r in range(2):
        for seg in (0, 3, 4, 1, 2):
            d = KA + 4 * seg if seg < 3 else KB_ + 4 * (seg - 3)
            for h in range(2):
                bg.append(I(f"ds_read_b64_tr_b16 {vr(d+2*h,2)}, v12 offset:{r*5120 + seg*32 + h*2560}"))
        if r == 0:
            bg.append(After(M3 + 1)); bg.extend(h_unit(T(6), 1, 0, 0, nq(), "h1")[:26])
        else: bg.extend(h_unit(T(6), 1, 0, 0, E0 + 4 * oq[0], "h1")[26:])
        for rb in range(3):
            for cb in range(2):
                d = vr(accr[cb * 3 + rb], 4)
                bg.append(I(f"v_mfma_f32_16x16x32_bf16 {d}, {vr(KA+4*rb,4)}, {vr(KB_+4*cb,4)}, {'0' if r == 0 else d}"))
    bg.append(I(f"v_add_u32 v14, {S.scrw}, v1"))
    bg.append(Skip(1))
    for sl in range(6): bg.append(I(f"ds_write_b128 v14, {vr(accr[sl],4)} offset:{sl*1024}", "red"))
    bg.extend(h_unit(T(7), 1, 1, 0, nq(), "h1"))
    bg.append(I(f"v_add_u32 v14, {S.redb}, v1"))
    bg.append(Group(Is("@waitlgkm red\ns_barrier")))
    RR = (T(1), T(3))
    for cb in range(2):
        for src in range(4): bg.append(I(f"ds_read_b128 {vr(RR[cb]+4*src,4)}, v14 offset:{src*10240+cb*3072}", "red2"))
    bg.append(Skip(3))
    for cb in range(2):
        b = RR[cb]
        for i in range(4): bg.extend(Is(f"v_add_f32 v{b+i}, v{b+i}, v{b+4+i}\nv_add_f32 v{b+8+i}, v{b+8+i}, v{b+12+i}"))
        for i in range(4): bg.append(I(f"v_add_f32 v{b+i}, v{b+i}, v{b+8+i}"))
        bg.append(I(f"buffer_store_dwordx4 {vr(b,4)}, v1, s[4:7], {S.kvp} offen offset:{cb*3072} sc1", "kvp"))
    bg.append(By(bar_idx[26]))
    for tb in range(2): bg.extend(h_unit(T(8 + tb), 1, tb, 512, nq(), "h1"))
    bg.append(By(M4))
    bg.extend(Is(f"v_mov_b32 v{E0+12}, -1\nv_mov_b32 v{E0+13}, -1\nv_mov_b32 v{E0+14}, -1\nv_mov_b32 v{E0+15}, -1"))
    bg.extend(setflag(S.fko, 1, "kvp", 15))
    bg.append(After(M4 + 1))
    bg.extend(h_unit(T(4), 2, 0, 512, nq(), "h2"))
    bg.extend(Is(f"v_add_u32 v11, 0x10000, v1\nv_add_u32 v12, 0x20000, v1"))
    bg.append(After(M4 + 24))
    bg.extend(setflag(S.fo, 3, "h1", 15))
    bg.append(poll(S.fkl, 15, S.p('lo32')))
    bg.extend(h_unit(T(5), 2, 1, 512, nq(), "h2"))
    bg.append(After(M4 + 50))
    bg.append(check(S.fkl, 15, 1, S.p("lo32"), "Lkv", S.t2))
    SS = q4(T(1), 4) + [T(3)]
    BUF = [q4(T(4), 4) + [T(3) + 4], q4(T(5), 4) + [T(3) + 8]]
    gl = []
    for p, dst in enumerate((SS, BUF[0])):
        for m in range(5):
            g_ = Is(f"s_add_u32 {S.kvg}, {S.kvg}, 6144") if (p and m == 0) else []
            gl.append(g_ + Is(f"buffer_load_dwordx4 {vr(dst[m],4)}, v13, s[4:7], {S.kvg} offen offset:{(m>>1)*1024+(m&1)*512} sc1"))
    hu = h_unit(T(0), 2, 0, 0, nq(), "h2") + h_unit(T(2), 2, 1, 0, nq(), "h2")
    for n, g_ in enumerate(gl):
        bg.extend(g_); bg.extend(hu[n * 8:(n + 1) * 8])
    bg.extend(hu[80:])
    bg.extend(htouch(1))
    bg.extend(Is(f"s_mul_i32 {S.t2}, s3, 5120\ns_add_u32 {S.t2}, {S.t2}, {SCR}\nv_add_u32 v14, {S.t2}, v1"))
    bg.append(By(M5a))
    for m in range(5):
        for i in range(4): bg.append(I(f"v_add_f32 v{SS[m]+i}, v{SS[m]+i}, v{BUF[0][m]+i}"))
        bg.append(I(f"ds_write_b128 v14, {vr(SS[m],4)} offset:{m*1024}", "g2"))
    bg.append(I(f"v_add_u32 v14, {SCR}, v1"))
    bg.append(Skip(2))
    bg.append(Group(Is("@waitlgkm g2\ns_barrier")))
    for w, dst in enumerate((SS, BUF[0], BUF[1])):
        for m in range(5): bg.append(I(f"ds_read_b128 {vr(dst[m],4)}, v14 offset:{w*5120+m*1024}"))
    bg.append(Skip(2))
    for m in range(5):
        for i in range(4): bg.append(I(f"v_add_f32 v{SS[m]+i}, v{SS[m]+i}, v{BUF[0][m]+i}"))
        bg.append(I(f"ds_read_b128 {vr(BUF[0][m],4)}, v14 offset:{3*5120+m*1024}"))
    for m in range(5):
        for i in range(4): bg.append(I(f"v_add_f32 v{SS[m]+i}, v{SS[m]+i}, v{BUF[1][m]+i}"))
    for m in range(5):
        for i in range(4): bg.append(I(f"v_add_f32 v{SS[m]+i}, v{SS[m]+i}, v{BUF[0][m]+i}"))
    PH = [q4(T(4), 4) + [T(3) + 8], q4(T(5), 4) + [T(3) + 4]]
    for tb in range(2):
        for m in range(5):
            n = tb * 5 + m
            if n % 4 == 0: bg.append(I(f"s_add_u32 {S.t2}, {S.phq}, {n*1024}"))
            bg.append(I(f"buffer_load_dwordx4 {vr(PH[tb][m],4)}, v1, s[4:7], {S.t2} offen offset:{(n%4)*1024}"))
    bg.extend(setflag(S.fo, 4, "h2", 15))
    bg.extend(htouch(2))
    bg.append(By(bar_idx[36]))
    for m in range(5):
        s_ = SS[m]
        bg.extend(Is(f"v_cvt_pk_bf16_f32 v{s_}, v{s_}, v{s_+1}\nv_cvt_pk_bf16_f32 v{s_+1}, v{s_+2}, v{s_+3}\nv_mov_b32 v{s_+2}, 0\nv_mov_b32 v{s_+3}, 0"))
    for m in range(5):
        s_ = SS[m]
        bg.extend(Is(f"v_permlane32_swap_b32 v{s_}, v{s_+2}\nv_permlane32_swap_b32 v{s_+1}, v{s_+3}"))
    bg.extend(Is(f"v_mov_b32 v{SS[4]+2}, 0\nv_mov_b32 v{SS[4]+3}, 0"))
    bg.append(After(M5a + 1))
    bg.extend(h_unit(T(6), 3, 0, 0, nq(), "h3"))
    bg.extend(h_unit(T(7), 3, 1, 0, nq(), "h3"))
    OC = [T(6), T(7)]
    for tb in range(2):
        d = vr(OC[tb], 16)
        for m in range(5):
            bg.append(I(f"v_mfma_f32_32x32x16_bf16 {d}, {vr(SS[m],4)}, {vr(PH[tb][m],4)}, {'0' if m == 0 else d}"))
    bg.append(By(M5b))
    bg.extend(h_unit(T(8), 3, 0, 512, nq(), "h3"))
    for tb in range(2):
        c = OC[tb]
        bg.extend(Is(f"v_add_f32 v{c+10}, 0x358637bd, v{c+10}\nv_rcp_f32 v{c+10}, v{c+10}\nv_nop"))
        for i in range(10): bg.append(I(f"v_mul_f32 v{c+i}, v{c+i}, v{c+10}"))
        for i in range(5): bg.append(I(f"v_cvt_pk_bf16_f32 v{c+12+i if i < 4 else c+11}, v{c+2*i}, v{c+2*i+1}"))
        bg.append(I(f"buffer_store_dwordx4 {vr(c+12,4)}, v3, s[4:7], {(S.oa,S.ob)[tb]} offen sc1", "h3"))
        bg.append(I(f"buffer_store_dword v{c+11}, v4, s[4:7], {(S.ota,S.otb)[tb]} offen sc1", "h3"))
    bg.extend(h_unit(T(9), 3, 1, 512, nq(), "h3"))
    bg.append(After(M5b + 1))
    bg.extend(h_unit(T(0), 4, 0, 0, nq(), "h4"))
    bg.extend(h_unit(T(2), 4, 1, 0, nq(), "h4"))
    bg.append(After(MK - 8))
    bg.extend(setflag(S.fo, 5, "h3", 15))
    bg.extend(htouch(3))
    bg.append(By(MK))
    bg.append(After(MK + 1))
    bg.extend(h_unit(T(4), 4, 0, 512, nq(), "h4"))
    bg.extend(h_unit(T(5), 4, 1, 512, nq(), "h4"))
    bg.append(By(MK + TAIL))
    bg.append(After(MK + TAIL + ACK))
    bg.extend(htouch(4)[:-1])
    bg.extend(setflag(S.fo, 6, "h4", 15))
    bg.extend(htouch(4)[-1:])
    bg.append(By(MK + TAIL + ACK + 4))
    bg.extend(setup4)
    bg.extend(Is(f"""s_load_dwordx2 s[8:9], s[0:1], 0
    s_load_dwordx2 s[12:13], s[0:1], 64
    v_lshrrev_b32 v13, 2, v0
    v_and_b32 v2, 15, v13
    v_mul_u32_u24 v2, 1152, v2
    v_lshrrev_b32 v13, 4, v13
    v_lshl_add_u32 v2, v13, 3, v2
    s_cmp_eq_u32 s3, {S.sp}"""))
    bg.pop()
    bg.append(Group(Is(f"s_cmp_eq_u32 s3, {S.sp}\ns_cselect_b32 {S.t2}, 0, {OOB}\nv_add_u32 v4, {S.t2}, v1")))
    bg.append(Group(Is(f"s_waitcnt lgkmcnt(0)\ns_mov_b32 s10, {2048*1152}\ns_mov_b32 s11, 0x20000\ns_mov_b32 s14, {2048*1152}\ns_mov_b32 s15, 0x20000")))
    def send(acc, soff, off, tag):
        L = []
        for i in range(4): L += Is(f"v_cvt_pk_bf16_f32 v{acc+i}, v{acc+2*i}, v{acc+2*i+1}")
        L += Is(f"buffer_store_dwordx4 {vr(acc,4)}, v1, s[4:7], {soff} offen offset:{off} sc1", tag)
        return L
    bg.append(After(Men["A"] + 1))
    for p in range(4): bg.extend(send(ACC["A"][p], (S.g1a, S.g1b)[p >> 1], (p & 1) * 1024, "s1"))
    bg.append(I(f"s_add_u32 {S.t2}, {S.snd}, 8192"))
    bg.extend(send(ACC["A"][4], S.t2, 0, "s1"))
    bg.append(Skip(SACK))
    bg.extend(setflag(S.fo, 7, "s1", 15))
    bg.append(After(Mst["W"] + 1))
    for p in range(2): bg.extend(send(ACC["B"][p], S.g2, p * 1024, "s2"))
    XR = E0
    bg.append(After(Mst["O"] + XAT))
    for b in range(3):
        for tb in range(2):
            bg.append(I(f"buffer_load_dwordx2 {vr(XR+4*b+2*tb,2)}, v2, s[8:11], {((S.xo0,S.xo1),(S.xo2,S.xo3))[b//2][tb]} offen offset:{32*b if b < 2 else 0}"))
    bg.append(After(MEND - PSN))
    bg.append(poll(S.fol, 15, S.p('msnd')))
    bg.append(Skip(36))
    bg.append(check(S.fol, 15, 7, S.p('msnd'), "Lsn", S.t2))
    RQ = q4(T(6), 10)
    PQ = lambda n, b: RQ[2 * n + b]
    B8 = RQ[6:10]
    for n in (1, 2):
        for b in range(2): bg.append(I(f"buffer_load_dwordx4 {vr(PQ(n,b),4)}, v1, s[4:7], {(S.rc1,S.rc2,S.rc3)[n]} offen offset:{b*1024} sc1"))
    for n in range(4): bg.extend(Is(f"s_add_u32 {S.t2}, {S.xchw}, {n*4*9216 + 8192}\nbuffer_load_dwordx4 {vr(B8[n],4)}, v4, s[4:7], {S.t2} offen sc1"))
    late = Is("\n".join(f"buffer_load_dwordx4 {vr(PQ(0,b),4)}, v1, s[4:7], {S.rc1} offen offset:{b*1024} sc1" for b in range(2)))
    bg.append(After(MEND - LATE))
    bg.extend(late)
    iob = deque()
    iob.append(After(bar_idx[32] + 20, True))
    iob.append(Group(Is(f"s_mov_b32 {S.mwd}, -1\ns_mov_b32 {S.hi('mwd')}, {(1 << 22) - 1}")))
    pw_ = Is(polltxt(S.ta1, E0 + 16, S.p('mwd')))
    iob.extend(pw_[:3]); iob.append(Group(pw_[3:6])); iob.extend(pw_[6:-3]); iob.append(Group(pw_[-3:])); iob.append(By(bar_idx[36]))
    if 'tw' in TOUCH:
        TW = [(S.wda, 6656, 0, TW0), (S.wdb, 2688, 1, TW1)] + ([(S.wot, 6656, 0, TW2)] if first else [])
        for base, stride, two, at in TW:
            iob.append(After(at))
            iob.extend(Is(f"""s_and_b32 {S.tb0}, {S.idx}, 7
            s_lshl_b32 {S.tb0}, {S.tb0}, 2
            s_add_u32 {S.tb0}, {S.tb0}, s3
            s_mul_i32 {S.tb0}, {S.tb0}, {stride}
            s_sub_u32 {S.tb0}, {S.tb0}, {S.wl}
            s_add_u32 {S.tb0}, {S.tb0}, {base}
            v_lshlrev_b32 v{E0+18}, 5, v0"""))
            if two: iob.extend(Is(f"v_lshrrev_b32 v{E0+17}, 7, v0\nv_mul_u32_u24 v{E0+17}, {(WD2 - WDB - 4096) // 128}, v{E0+17}\nv_lshl_add_u32 v{E0+18}, v{E0+17}, 7, v{E0+18}"))
            iob.append(I(f"buffer_load_dword v{E0+18}, v{E0+18}, s[4:7], {S.tb0} offen"))
    PVS = {1: E0 + 20, 2: E0 + 21, 3: E0 + 22, 4: E0 + 23}
    PV = E0 + 21
    gates = {0: (1, S.p('mown'), "L1", M5a - 40, M5b - 4, 3), 12: (2, S.p('mown'), "L2", M5a + 44, M5b + 24, 4),
             20: (3, S.p("mown"), "L3", MK + P3, MK + C3, 5), 28: (4, S.p('mown'), "L4", MK + P4, MK + C4, 6), 36: (1, S.p("lo32"), "Lo", MK + P4 + 6, MK + C4, 5)}
    for g_ in gates.values(): post.setdefault(g_[3], []).extend(poll(S.fin, PVS[g_[0]], g_[1]).ins)
    for st in range(54):
        iob.append(Need(firstuse[st] - 40))
        if st in gates:
            lv, mk, nm, pa, ca, level = gates[st]
            iob.append(After(ca, True)); iob.append(check(S.fin, PVS[lv], level, mk, nm, S.tb0))
        lead = LEADB if st < 36 else LEADO
        if firstuse[st] - lead > MK: iob.append(After(firstuse[st] - lead))
        if st < 32: iob.append(After(M5b + 2 * st + 1, True))
        elif st == 32: iob.append(After(MK + TAIL, True))
        elif st >= 44: iob.append(After(Mst["W"] + 4 * (st - 44) + 3, True))
        if st == 36: iob.extend(Is(f"s_mul_i32 {S.tb0}, {S.sp}, {36*1024}\ns_sub_u32 {S.bb0}, {S.bb0}, {S.tb0}\ns_sub_u32 {S.bb1}, {S.bb1}, {S.tb0}"))
        off = st * 1024 if st < 36 else (st - 36 - 18) * 1024
        if st % 4 == 0:
            base = off; iob.extend(Is(f"s_add_u32 {S.tb0}, {S.bb0}, {off & 0xffffffff}\ns_add_u32 {S.tb1}, {S.bb1}, {off & 0xffffffff}"))
        for tb in range(2): iob.append(I(f"buffer_load_dwordx4 {breg(st,tb)}, v1, s[4:7], {(S.tb0,S.tb1)[tb]} offen offset:{off-base}{BSC}"))
        iob.append(By(firstuse[st]))
    if stamps:
        for d in stset:
            idx = eval(d) if isinstance(d, str) else bar_idx[d]
            post.setdefault(idx, []).extend(stamp())
    if trace:
        for n, idx in enumerate(range(tstart, MEND - 8, trace)):
            if n > 63: break
            post.setdefault(idx, []).append(I(f"{STAMPOP} s[98:99]"))
            post.setdefault(idx + min(5, trace - 1), []).append(I(f"v_writelane_b32 v68, s98, {n}"))
    out = []
    boost = {id(m) for m in main[MK:MK + TAIL]}
    def vg(i):
        if i < M2: return VG1
        if i < M5a: return VG
        if i < MK: return VG5
        return VG3
    weave(out, main, pre, post, [ioa, iob, bg], lambda m: (6, 6, 40) if m.passes == 8 else ((4, 5, 32) if id(m) in boost else (2, 2, 16)), vmgap=vg,
          reserve=lambda i: 1 if i % 4 == 3 else 0, nio=2, bgvm=lambda i: VGS if Men['A'] < i < Mst['O'] + XAT else (BG1 if i < M2 else 64))
    k.log = list(weave.log); k.marks = dict(M2=M2, M3=M3, M4=M4, M5a=M5a, M5b=M5b, MK=MK, MEND=MEND, **Mst)
    txt = [x.text for x in out]
    sets = [n for n, t in enumerate(txt) if t.startswith("buffer_store_dword v15, off")]
    chk = {nm: next((n for n, t in enumerate(txt) if t.startswith(f"s_cbranch_scc1 {nm}_")), 1 << 30) for nm in ("Lwd", "Lkv", "L1", "L2", "L3", "L4", "Lsn")}
    assert all(a_ < b_ for a_, b_ in zip(sets, chk.values())), (sets, chk)
    k(out)
    k(stamp())
    fl = 'f' if first else 'o'
    k(f"s_mov_b32 {S.t3}, 100000\nLchk_{fl}:\ns_waitcnt vmcnt(0)")
    r = RQ[0]
    k(f"v_max3_u32 v14, v{r}, v{r+1}, v{r+2}\nv_max3_u32 v15, v{r+3}, v{r+4}, v{r+5}\nv_max3_u32 v14, v14, v{r+6}, v{r+7}\nv_max_u32 v14, v14, v15\nv_cmp_eq_u32 vcc, -1, v14\ns_nop 4\ns_cbranch_vccz Lok_{fl}")
    k(f"s_sub_u32 {S.t3}, {S.t3}, 1\ns_cmp_eq_u32 {S.t3}, 0\ns_cbranch_scc1 Lok_{fl}")
    if stamps: k("s_add_u32 s101, s101, 1")
    k([I(x.text) for x in late]); k(f"s_branch Lchk_{fl}\nLok_{fl}:\n@reset")
    k(stamp())
    def fin_unit(acc, parts, sreg, xreg_, soff, off, t):
        L = []
        for i in range(4):
            sel = S.c58 if i % 2 == 0 else S.c59
            for n, p in enumerate(parts):
                d = acc + i if acc is not None else t + 8 + i
                c = f"v{d}" if (acc is not None or n > 0) else "0"
                L += Is(f"v_dot2_f32_bf16 v{d}, v{p + i//2}, {sel}, {c}")
        f = acc if acc is not None else t + 8
        for i in range(4): L += Is(f"v_mul_f32 v{t+i}, {S.nL}, v{f+i}")
        for i in range(4): L += Is(f"v_exp_f32 v{t+i}, v{t+i}")
        for i in range(4): L += Is(f"v_mul_f32 v{f+i}, v{f+i}, v{sreg+i}")
        for i in range(4): L += Is(f"v_add_f32 v{t+i}, 1.0, v{t+i}")
        for i in range(4): L += Is(f"v_rcp_f32 v{t+i}, v{t+i}")
        for i in range(4): L += Is(f"v_lshlrev_b32 v{t+4+i}, 16, v{xreg_+i//2}" if i % 2 == 0 else f"v_and_b32 v{t+4+i}, 0xffff0000, v{xreg_+i//2}")
        for i in range(4): L += Is(f"v_fma_f32 v{f+i}, v{f+i}, v{t+i}, v{t+4+i}")
        L += Is(f"v_cvt_pk_bf16_f32 v{t+12}, v{f}, v{f+1}\nv_cvt_pk_bf16_f32 v{t+13}, v{f+2}, v{f+3}")
        L += Is(f"buffer_store_dwordx2 {vr(t+12,2)}, v2, s[12:15], {soff} offen offset:{off}")
        return L
    TT = [T(9), T(0), T(2), T(5)]
    for b in range(2):
        for tb in range(2):
            k(fin_unit(ACC["W"][b] + 4 * tb, [PQ(n, b) + 2 * tb for n in range(3)], ACC['O'][b] + 4 * tb, XR + 4 * b + 2 * tb, (S.xo0, S.xo1)[tb], 32 * b, TT[2 * b + tb]))
    k(f"s_cmp_eq_u32 s3, {S.sp}\ns_cbranch_scc0 Ldone_{fl}")
    for tb in range(2):
        k(fin_unit(None, [B8[n] + 2 * tb for n in range(4)], ACC['O'][2] + 4 * tb, XR + 8 + 2 * tb, (S.xo2, S.xo3)[tb], 0, 16 + 16 * tb))
    k(f"Ldone_{fl}:")
    if trace:
        k(f"s_lshl_b32 {S.t2}, s2, 2\ns_add_u32 {S.t2}, {S.t2}, s3\ns_lshl_b32 {S.t2}, {S.t2}, 8\ns_add_u32 {S.t2}, {S.t2}, {STAMP + (2<<20)}\nbuffer_store_dword v68, v0, s[4:7], {S.t2} offen")
    if stamps:
        k("s_waitcnt vmcnt(0)")
        k(stamp())
        k(f"s_waitcnt lgkmcnt(0)\ns_lshl_b32 {S.t2}, s2, 2\ns_add_u32 {S.t2}, {S.t2}, s3\ns_lshl_b32 {S.t2}, {S.t2}, 7\ns_add_u32 {S.t2}, {S.t2}, {STAMP + (1<<20)}")
        for i in range(nst[0]):
            k(f"v_mov_b32 v16, s{ST0+2*i}\nv_mov_b32 v17, s{ST0+2*i+1}\nbuffer_store_dwordx2 v[16:17], off, s[4:7], {S.t2} offset:{8*i}\ns_nop 1")
        k(f"v_mov_b32 v16, s100\nv_mov_b32 v17, s101\nbuffer_store_dwordx2 v[16:17], off, s[4:7], {S.t2} offset:120")
    k("s_endpgm")
    for lab, line, vreg, body, treg in spins:
        gi_ = ('Lkv', 'L1', 'L2', 'L3', 'L4', 'Lsn', 'Lwd', 'Lo').index(lab.split('_')[0]) % 6
        if first and lab[0] == 'K': continue
        k(f"""{lab}_spin:
        @reset
        s_mov_b32 s79, 200000
        {lab}_spin2:
        s_sleep 1
        {'s_add_u32 s100, s100, %d' % (1 << (5 * gi_)) if stamps else ''}
        {polltxt(line, vreg, treg)}
        s_waitcnt vmcnt(0)
        {body}
        s_cbranch_scc0 {lab}_back
        s_sub_u32 s79, s79, 1
        s_cmp_eq_u32 s79, 0
        s_cbranch_scc0 {lab}_spin2
        s_branch {lab}_back""")
    k.nstamps = nst[0]; k.S = S
    return k

class Fused:
    def __init__(self, **kw):
        a = build(False, **kw)
        self.final = a.finalize() + Is("LM_end:\ns_endpgm")
        self.name = a.name; self.a = a; self.b = a; self.nops = a.nops; self.nstamps = a.nstamps
    def text(self):
        body = "\n".join((x.text if x.kind == "label" else "    " + x.text) for x in self.final)
        tab = []
        for j in range(32):
            row = [(18 + POS[j][c]) * 1024 + ((j & 1) * 512 if c == 0 else 0) for c in range(5)]
            row += [(j >> 1) * 1024 + (j & 1) * 512, (16 + (j >> 4)) * 1024 + ((j & 15) >> 2) * 256 + (j & 3) * 4, 0]
            tab.append(".long " + ", ".join(map(str, row)))
        return (f".globl {self.name}\n.p2align 8\n.type {self.name},@function\n{self.name}:\n{body}\n.p2align 6\n.type L_postab,@object\nL_postab:\n" + "\n".join(tab) +
                "\n.type L_kkhtab,@object\nL_kkhtab:\n.long " + ", ".join(map(str, KKH)) + "\n")
    def desc(self): return self.a.desc()
```

```python
import os
KB = 1024
XN   = 0
W1Q  = XN + 64*36*KB
W1S  = W1Q + 32*9*8*KB
PHIA = W1S + 32*5*8*KB
WOT  = PHIA + 32*6*KB
WDA  = WOT + 4*4*18*3*KB
WDB  = WDA + 4*144*5*KB
WD2  = WDB + 4*144*2*KB
HX   = WD2 + 4*144*2*KB + 64*KB
KVP  = HX + 128*162*KB + 64*KB
PHQ  = KVP + 32*8*6*KB
FLG  = PHQ + 256*4*2*5*KB
FKV  = FLG + 128*KB
XCH  = FLG + 256*KB
SXC  = XCH + 64*4*4*9*KB
WSEND = SXC + 64*4*9*KB + 4*KB
STAMP = 128*1024*1024
WS_BYTES = 268435456
HXROW = 162*KB
HP0 = [0, 36, 72, 108, 144]
OOB = 0x7ffffff0
assert WSEND < STAMP
STAMPOP = os.environ.get("STAMPOP", "s_memrealtime")

def _tables():
    pos = [[0] * 5 for _ in range(32)]
    for j in range(32):
        b, jj = j >> 3, j & 7
        base = HP0[b]
        pos[j] = [base + (jj >> 1), base + 4 + jj, base + 12 + jj, base + 20 + jj, base + 28 + jj]
    kkh = [None] * 144
    for j in range(32):
        kkh[pos[j][0]] = 128 + (j >> 1)
        for c in range(1, 5): kkh[pos[j][c]] = 4 * j + c - 1
    assert sorted(kkh) == list(range(144))
    return pos, kkh
POS, KKH = _tables()
def split_of(hp): return sum(hp >= HP0[i] for i in (1, 2, 3))
def blocks_of(s):
    t1, t2, t3 = (s + 1) & 3, (s + 2) & 3, (s + 3) & 3
    return [2*t2, 2*t2+1, 2*t3, 2*t3+1, 8], [2*t1, 2*t1+1], [2*s, 2*s+1]
```
